```python
import torch

def _softmax(x, axis=-1):
    return torch.softmax(x, dim=axis)

def _gelu(x):
    return torch.nn.functional.gelu(x, approximate='tanh')

def _silu(x):
    return torch.nn.functional.silu(x)

def _sigmoid(x):
    return torch.sigmoid(x)

def _layernorm(x, axis=-1, eps=1e-05):
    m = x.mean(dim=axis, keepdim=True)
    v = x.var(dim=axis, keepdim=True, unbiased=False)
    return (x - m) / torch.sqrt(v + eps)

def _scatter_add(tgt, idx, src, axis=0):
    return tgt.clone().index_add_(axis, idx, src)

def _segment_sum(src, seg, n):
    out = torch.zeros((n,) + src.shape[1:], dtype=src.dtype)
    return out.index_add_(0, seg, src)

def _pad(x, pw):
    flat = tuple((v for pair in reversed(pw) for v in pair))
    return torch.nn.functional.pad(x, flat)
kernel_name = 'adaLN_cond__memory_aug_recurrent_mem_tr__dense_activation_gelu__prompt'

def setup_inputs():

    _w = lambda a: (lambda t: t.to(torch.bfloat16) if t.is_floating_point() else t)(torch.as_tensor(a))

    def _A_setup():
        B, S, Dm = (1, 2048, 512)
        H, Dh = (32, 128)
        M, seg = (8, 32)
        seg = min(seg, S)
        S = S // seg * seg
        return {'x': _w((lambda *s: torch.randn(*s, dtype=torch.bfloat16) * 0.05)(B, S, Dm)), 'mem0': _w((lambda *s: torch.randn(*s, dtype=torch.bfloat16) * 0.8)(B, M, Dm)), 'Wq': _w((lambda *s: torch.randn(*s, dtype=torch.bfloat16) * 1.6)(Dm, H, Dh) * Dm ** (-0.5)), 'Wk': _w((lambda *s: torch.randn(*s, dtype=torch.bfloat16) * 1.6)(Dm, H, Dh) * Dm ** (-0.5)), 'Wv': _w((lambda *s: torch.randn(*s, dtype=torch.bfloat16) * 0.8)(Dm, H, Dh) * Dm ** (-0.5)), 'Wo': _w((lambda *s: torch.randn(*s, dtype=torch.bfloat16) * 0.8)(H, Dh, Dm) * (H * Dh) ** (-0.5)), 'seg_len': seg}
    _A_in = _A_setup()

    def _B_setup():
        B, S, D, F = (1, 2048, 512, 1376)
        return {'x': _w((lambda *s: torch.randn(*s, dtype=torch.bfloat16) * 0.05)(B, S, D)), 'w1': _w((lambda *s: torch.randn(*s, dtype=torch.bfloat16) * 1.6)(D, F) * D ** (-0.5)), 'b1': _w((lambda *s: torch.randn(*s, dtype=torch.bfloat16) * 1.6)(F) * 0.01), 'w2': _w((lambda *s: torch.randn(*s, dtype=torch.bfloat16) * 0.2)(F, D) * F ** (-0.5)), 'b2': _w((lambda *s: torch.randn(*s, dtype=torch.bfloat16) * 0.2)(D) * 0.01)}
    _B_in = _B_setup()
    return {'A_x': _A_in['x'], 'A_mem0': _A_in['mem0'], 'A_Wq': _A_in['Wq'], 'A_Wk': _A_in['Wk'], 'A_Wv': _A_in['Wv'], 'A_Wo': _A_in['Wo'], 'A_seg_len': _A_in['seg_len'], 'B_x': _B_in['x'], 'B_w1': _B_in['w1'], 'B_b1': _B_in['b1'], 'B_w2': _B_in['w2'], 'B_b2': _B_in['b2'], 'c': _w((lambda *s: torch.randn(*s, dtype=torch.bfloat16) * 0.05)(1, 512) * 8.0), 'w_mod': _w((lambda *s: torch.randn(*s, dtype=torch.bfloat16) * 0.05)(512, 6 * 512) * 512 ** (-0.5) * 8.0)}

def reference(A_x, A_mem0, A_Wq, A_Wk, A_Wv, A_Wo, A_seg_len, B_x, B_w1, B_b1, B_w2, B_b2, c, w_mod):

    def _A_ref(x, mem0, Wq, Wk, Wv, Wo, seg_len):
        B, S, Dm = x.shape
        H, Dh = (Wq.shape[1], Wq.shape[2])
        M = mem0.shape[1]
        scale = Dh ** (-0.5)
        n_seg = S // seg_len
        L = M + seg_len
        idx = torch.arange(L)
        mask = (idx[:, None] < M) | (idx[:, None] >= idx[None, :])
        mem = mem0
        outs = []
        for s in range(n_seg):
            xs = x[:, s * seg_len:(s + 1) * seg_len, :].clone()
            h = torch.concatenate([mem, xs], axis=1)
            q = torch.einsum('btd,dhe->bhte', h, Wq)
            k = torch.einsum('btd,dhe->bhte', h, Wk)
            v = torch.einsum('btd,dhe->bhte', h, Wv)
            scores = torch.einsum('bhqe,bhke->bhqk', q, k) * scale
            scores = torch.where(mask[None, None], scores, -1000000000.0)
            p = _softmax(scores, axis=-1)
            o = torch.einsum('bhqk,bhke->bhqe', p, v)
            o = torch.einsum('bhte,hed->btd', o, Wo)
            mem = o[:, :M, :].clone()
            outs.append(o[:, M:, :])
        return torch.concatenate(outs, axis=1)

    def _B_ref(x, w1, b1, w2, b2):
        h = torch.einsum('bsd,df->bsf', x, w1) + b1
        h = _gelu(h)
        return torch.einsum('bsf,fd->bsd', h, w2) + b2
    x = A_x
    mod = (_silu(c) @ w_mod).reshape(c.shape[0], 6, 1, -1)
    sa, ca, ga, sb, cb, gb = (mod[:, 0].clone(), mod[:, 1].clone(), mod[:, 2].clone(), mod[:, 3].clone(), mod[:, 4].clone(), mod[:, 5].clone())
    h = _layernorm(x, axis=-1) * (1 + ca) + sa
    x = x + ga * _A_ref(h, A_mem0, A_Wq, A_Wk, A_Wv, A_Wo, A_seg_len)
    h = _layernorm(x, axis=-1) * (1 + cb) + sb
    x = x + gb * _B_ref(h, B_w1, B_b1, B_w2, B_b2)
    return x
```

```python
import re

def R(kind, i, n=1):
    return f"{kind}{i}" if n == 1 else f"{kind}[{i}:{i+n-1}]"
def v(i, n=1): return R("v", i, n)
def a(i, n=1): return R("a", i, n)
def s(i, n=1): return R("s", i, n)

_reg_re = re.compile(r"^(-|\|)?(v|a|s)(?:(\d+)|\[(\d+):(\d+)\])\|?$")

def regs_of(tok):
    tok = tok.strip()
    if tok in ("vcc", "vcc_lo", "vcc_hi"): return {("x", "vcc")}
    if tok in ("exec", "exec_lo", "exec_hi"): return {("x", "exec")}
    if tok == "m0": return {("x", "m0")}
    if tok == "scc": return {("x", "scc")}
    t = tok
    if t.startswith("abs(") and t.endswith(")"): t = t[4:-1]
    if t.startswith("neg(") and t.endswith(")"): t = t[4:-1]
    m = _reg_re.match(t)
    if not m: return set()
    k = m.group(2)
    if m.group(3) is not None:
        return {(k, int(m.group(3)))}
    return {(k, i) for i in range(int(m.group(4)), int(m.group(5)) + 1)}

def split_ops(rest):
    ops, cur, depth = [], "", 0
    for ch in rest:
        if ch in "[(": depth += 1
        if ch in "])": depth -= 1
        if ch == "," and depth == 0:
            ops.append(cur.strip()); cur = ""
        else:
            cur += ch
    if cur.strip(): ops.append(cur.strip())
    return ops

TRANS = ("v_exp_f32", "v_log_f32", "v_rcp_f32", "v_rsq_f32", "v_sqrt_f32", "v_sin_f32", "v_cos_f32", "v_rcp_iflag_f32")
RMW = ("v_fmac_", "v_mac_", "v_dot2c_", "v_pk_fmac", "v_writelane")

class Ins:
    def __init__(self, text):
        self.text = text
        t = text.split(";")[0].strip()
        parts = t.split(None, 1)
        self.mn = parts[0]
        rest = parts[1] if len(parts) > 1 else ""
        ops = split_ops(rest)
        mods = []
        if ops:
            last = ops[-1]
            toks, cur, depth = [], "", 0
            for ch in last:
                if ch in "[(": depth += 1
                if ch in "])": depth -= 1
                if ch.isspace() and depth == 0:
                    if cur: toks.append(cur); cur = ""
                else: cur += ch
            if cur: toks.append(cur)
            ops[-1] = toks[0]
            mods = toks[1:]
        self.ops, self.mods = ops, mods
        mn = self.mn
        self.kind = None
        self.dst, self.src = set(), set()
        self.srcA = self.srcB = self.srcC = set()
        rs = [regs_of(o) for o in ops]
        U = lambda l: set().union(*l) if l else set()
        self.dpp = any(m.startswith(("row_", "quad_perm", "wave_", "row_bcast", "row_mirror", "row_half_mirror")) for m in mods) or mn.endswith("_dpp")
        if mn.startswith("v_mfma"):
            self.kind = "mai"; self.dst = rs[0]; self.srcA, self.srcB = rs[1], rs[2]; self.srcC = rs[3]
            self.src = rs[1] | rs[2] | rs[3]
            self.passes = 8 if "32x32" in mn else 4
            if "f32_16x16x4_f32" in mn: self.passes = 8
        elif mn.startswith("v_smfmac"):
            self.kind = "mai"; self.dst = rs[0]; self.srcA, self.srcB = rs[1], rs[2]; self.srcC = rs[0]
            self.idx = rs[3]
            self.src = rs[0] | rs[1] | rs[2] | rs[3]
            self.passes = 8 if "32x32" in mn else 4
        elif mn.startswith("v_cmp"):
            self.kind = "valu"; self.dst = rs[0]; self.src = U(rs[1:])
            if mn.startswith("v_cmpx"): self.dst = self.dst | {("x", "exec")}
        elif mn.startswith(("v_permlane16_swap", "v_permlane32_swap")):
            self.kind = "valu"; self.dst = rs[0] | rs[1]; self.src = rs[0] | rs[1]; self.permlane = True
        elif mn.startswith("v_"):
            self.kind = "valu"; self.dst = rs[0]; self.src = U(rs[1:])
            if mn.startswith(RMW): self.src = self.src | rs[0]
            if mn.startswith(("v_add_co", "v_sub_co", "v_addc_co", "v_subb_co", "v_subrev_co")):
                self.dst = rs[0] | rs[1]; self.src = U(rs[2:])
            if mn.startswith("v_cndmask") and len(ops) == 3: self.src = self.src | {("x", "vcc")}
            if self.dpp: self.src = self.src | rs[0]
        elif mn.startswith("ds_"):
            self.kind = "lds"
            if mn.startswith(("ds_read", "ds_bpermute", "ds_permute", "ds_swizzle")):
                self.dst = rs[0]; self.src = U(rs[1:])
            else:
                self.src = U(rs)
        elif mn.startswith(("buffer_", "global_")):
            self.kind = "vmem"
            self.lds_dma = ("lds" in mods) or ("_lds_" in mn)
            if mn.startswith(("buffer_inv", "buffer_wbl2")):
                pass
            elif "load" in mn and not self.lds_dma:
                self.dst = rs[0]; self.src = U(rs[1:])
            elif "atomic" in mn and ("sc0" in mods):
                self.dst = rs[0]; self.src = U(rs)
            else:
                self.src = U(rs)
            if self.lds_dma: self.src = self.src | {("x", "m0")}
            self.wide_store = ("store" in mn) and mn.endswith(("x3", "x4"))
            if "store" in mn:
                self.data = rs[0] if mn.startswith("buffer_") else rs[1]
        elif mn.startswith("s_"):
            self.kind = "salu"
            if mn in ("s_waitcnt", "s_nop", "s_barrier", "s_endpgm", "s_sleep", "s_setprio", "s_branch") or mn.startswith("s_cbranch"):
                pass
            elif mn.startswith("s_cmp") or mn.startswith("s_bitcmp"):
                self.src = U(rs); self.dst = {("x", "scc")}
            elif mn.startswith(("s_load", "s_buffer_load", "s_memtime", "s_memrealtime")):
                self.kind = "smem"; self.dst = rs[0]; self.src = U(rs[1:])
            else:
                self.dst = rs[0] if rs else set(); self.src = U(rs[1:])
                if "saveexec" in mn: self.dst = self.dst | {("x", "exec")}; self.src = self.src | {("x", "exec")}
        else:
            raise ValueError("unknown instruction: " + text)
        self.trans = mn.replace("_e32", "").replace("_e64", "") in TRANS
        self.is_permlane = mn.startswith("v_permlane")

class Prog:
    def __init__(self, auto=True):
        self.out = []
        self.auto = auto
        self.hist = []
        self.clock = 0
        self.lgkm = []
        self.vm = []
        self.smem_pending = set()
        self.stats = {"nops": 0, "n": 0}
        self.last_mai = None
        self.pipe_model = True
        self.vm_total = 0

    def raw(self, text):
        self.out.append(text)

    def comment(self, text):
        self.out.append("    ; " + text)

    def label(self, name):
        self.out.append(name + ":")
        self.last_mai = None

    def vm_mark(self):
        return self.vm_total
    def vm_wait(self, mark):
        n = self.vm_total - mark
        self(f"s_waitcnt vmcnt({min(n,63)})")

    def flush_state(self):
        self.lgkm = []; self.vm = []; self.smem_pending = set()

    def _issue_time(self, ins):
        t = self.clock
        if self.pipe_model and ins.kind == "mai" and self.last_mai is not None:
            t = max(t, self.last_mai[0] + self.last_mai[1])
        return t

    def _emit(self, ins):
        self.out.append("    " + ins.text)
        self.stats["n"] += 1
        t = self._issue_time(ins)
        if ins.mn == "s_nop":
            self.clock = t + int(ins.ops[0], 0) + 1
        else:
            self.clock = t + 1
        if ins.kind == "mai": self.last_mai = (t, ins.passes)
        self.hist.append((ins, self.clock if ins.mn != "s_nop" else self.clock))
        if len(self.hist) > 40: self.hist.pop(0)
        if ins.mn == "s_waitcnt":
            t = ins.text
            m = re.search(r"vmcnt\((\d+)\)", t)
            if m:
                n = int(m.group(1))
                while len(self.vm) > n: self.vm.pop(0)
            m = re.search(r"lgkmcnt\((\d+)\)", t)
            if m:
                n = int(m.group(1))
                if n == 0: self.smem_pending = set()
                if not self.smem_pending or n == 0:
                    while len(self.lgkm) > n: self.lgkm.pop(0)
        elif ins.kind == "lds":
            self.lgkm.append(set(ins.dst))
        elif ins.kind == "vmem":
            self.vm.append(set(ins.dst)); self.vm_total += 1
        elif ins.kind == "smem":
            self.smem_pending |= ins.dst
            self.lgkm.append(set(ins.dst))

    def _need_wait(self, ins):
        touch = ins.src | ins.dst
        vm_n = lg_n = None
        for i, d in enumerate(self.vm):
            if d & touch: vm_n = len(self.vm) - 1 - i
        for i, d in enumerate(self.lgkm):
            if d & touch: lg_n = len(self.lgkm) - 1 - i
        if lg_n is not None and self.smem_pending: lg_n = 0
        return vm_n, lg_n

    def _need_nops(self, ins):
        need = 0
        now = self._issue_time(ins)
        for p, t in self.hist:
            dist = now - t
            req = 0
            pv = {r for r in p.dst if r[0] in "va"}
            if p.kind == "valu":
                if ins.kind == "mai" and (pv & ins.src): req = max(req, 2)
                if p.trans and ins.kind in ("valu", "mai") and (pv & ins.src): req = max(req, 1)
                if ins.kind == "valu" and ins.is_permlane and (pv & (ins.src | ins.dst)): req = max(req, 2)
                if ins.kind == "valu" and ins.dpp and (pv & ins.src): req = max(req, 2)
                if ins.kind == "valu" and ins.mn.startswith(("v_readfirstlane", "v_readlane")) and (pv & ins.src): req = max(req, 1)
                ps = {r for r in p.dst if r[0] == "s" or r == ("x", "vcc")}
                if ps:
                    if ins.kind == "valu" and (ps & ins.src): req = max(req, 2)
                    if ins.kind == "vmem" and (ps & ins.src): req = max(req, 5)
                    if ins.kind in ("salu", "smem") and (ps & ins.src): req = max(req, 4)
                if ("x", "exec") in p.dst:
                    if ins.kind == "mai": req = max(req, 4)
                    if ins.kind == "valu" and ins.dpp: req = max(req, 5)
                    if ins.kind == "valu" and ins.is_permlane: req = max(req, 4)
            if p.kind == "mai":
                P = p.passes
                rd = {4: 8, 8: 12, 16: 20}[P]
                if ins.kind == "mai":
                    if pv & (ins.srcA | ins.srcB | getattr(ins, "idx", set())): req = max(req, rd)
                    if pv & ins.srcC:
                        if ins.srcC == p.dst and ins.mn == p.mn: pass
                        else: req = max(req, {4: 6, 8: 10, 16: 18}[P])
                    if (pv & ins.dst) and not (ins.dst == p.dst and ins.mn == p.mn):
                        req = max(req, {4: 6, 8: 10, 16: 18}[P])
                elif ins.kind in ("valu", "lds", "vmem"):
                    if pv & (ins.src | ins.dst): req = max(req, rd)
                if ins.kind == "valu" and (p.srcC & ins.dst): req = max(req, {4: 3, 8: 7, 16: 15}[P])
            if p.kind == "vmem" and getattr(p, "wide_store", False) and ins.kind == "valu" and (p.data & ins.dst):
                req = max(req, 2)
            if p.kind == "salu" and ("x", "m0") in p.dst and ins.kind == "vmem" and getattr(ins, "lds_dma", False):
                req = max(req, 1)
            if req > dist: need = max(need, req - dist)
        return need

    def __call__(self, text):
        for line in text.split("\n"):
            line = line.strip()
            if not line: continue
            if line.startswith(";"):
                self.out.append("    " + line); continue
            ins = Ins(line)
            if self.auto:
                vm_n, lg_n = self._need_wait(ins)
                if vm_n is not None or lg_n is not None:
                    w = "s_waitcnt"
                    if vm_n is not None: w += f" vmcnt({min(vm_n,63)})"
                    if lg_n is not None: w += f" lgkmcnt({min(lg_n,15)})"
                    self._emit(Ins(w))
                n = self._need_nops(ins)
                while n > 0:
                    k = min(n, 16)
                    self._emit(Ins(f"s_nop {k-1}")); self.stats["nops"] += k
                    n -= k
            self._emit(ins)

    def text(self):
        return "\n".join(self.out) + "\n"

class VR:
    _cnt = 0
    def __init__(self, name, n=1, align=None):
        VR._cnt += 1
        self.name = f"{name}_{VR._cnt}"
        self.n = n
        self.align = align if align else (4 if n >= 4 else (2 if n == 2 else 1))
    def __str__(self): return f"%{self.name}:0:{self.n}%"
    def __format__(self, spec): return str(self)
    def __getitem__(self, k):
        if isinstance(k, slice):
            a_, b_ = k.start or 0, k.stop if k.stop is not None else self.n
            assert 0 <= a_ < b_ <= self.n
            return f"%{self.name}:{a_}:{b_}%"
        assert 0 <= k < self.n
        return f"%{self.name}:{k}:{k+1}%"

_ph = re.compile(r"%([A-Za-z0-9_]+):(\d+):(\d+)%")

class Region:
    def __init__(self, prog, pool):
        self.prog, self.pool = prog, sorted(pool)
        self.items = []
        self.vrs = {}
    def vr(self, name, n=1, align=None):
        r = VR(name, n, align); self.vrs[r.name] = r; return r
    def __call__(self, text):
        for line in text.split("\n"):
            line = line.strip()
            if line: self.items.append(("ins", line))
    def label(self, name): self.items.append(("label", name))
    def raw(self, text): self.items.append(("raw", text))
    def comment(self, text): self.items.append(("raw", "    ; " + text))
    def keep(self, *vrs): self.items.append(("keep", " ".join(str(x) for x in vrs)))
    def flush_state(self): self.items.append(("flush", ""))
    def finish(self, outer_labels=(), verbose=False):
        first, last = {}, {}
        labels = {}
        for i, (k, t) in enumerate(self.items):
            if k == "label": labels[t] = i
            for m in _ph.finditer(t):
                first.setdefault(m.group(1), i); last[m.group(1)] = i
        changed = True
        loops = []
        for i, (k, t) in enumerate(self.items):
            if k == "ins" and t.startswith(("s_cbranch", "s_branch")):
                tgt = t.split()[1]
                if tgt in labels and labels[tgt] < i and tgt not in outer_labels: loops.append((labels[tgt], i))
        while changed:
            changed = False
            for a_, b_ in loops:
                for nme in first:
                    if first[nme] <= b_ and last[nme] >= a_:
                        nf, nl = min(first[nme], a_) if first[nme] >= a_ else first[nme], max(last[nme], b_)
                        if (nf, nl) != (first[nme], last[nme]):
                            first[nme], last[nme] = nf, nl; changed = True
        order = sorted(first, key=lambda n_: (first[n_], -self.vrs[n_].n))
        import random
        def attempt(seed):
            rnd = random.Random(seed)
            busy = {}
            asg = {}
            poolset = set(self.pool)
            ordr = order if seed == 0 else sorted(first, key=lambda n_: (-self.vrs[n_].n + rnd.random() * 6, first[n_]))
            for nme in ordr:
                r = self.vrs[nme]; f_, l_ = first[nme], last[nme]
                cands = []
                for base in self.pool:
                    if base % r.align: continue
                    ok = True
                    for k in range(r.n):
                        ph = base + k
                        if ph not in poolset: ok = False; break
                        for (x, y) in busy.get(ph, ()):
                            if not (l_ < x or y < f_): ok = False; break
                        if not ok: break
                    if ok:
                        cands.append(base)
                        if seed == 0: break
                if not cands: return None
                base = cands[0] if seed % 2 == 0 else rnd.choice(cands[:3])
                asg[nme] = base
                for k in range(r.n): busy.setdefault(base + k, []).append((f_, l_))
            return asg
        asg = None
        for seed in range(3000):
            asg = attempt(seed)
            if asg: break
        if asg is None:
            mx, at = 0, 0
            for i in range(len(self.items)):
                pr = sum(self.vrs[n_].n for n_ in first if first[n_] <= i <= last[n_])
                if pr > mx: mx, at = pr, i
            raise RuntimeError(f"register allocation failed: max pressure {mx} at item {at} ({self.items[at]}), pool {len(self.pool)}; live: " +
                               ", ".join(f"{n_}({self.vrs[n_].n})" for n_ in first if first[n_] <= at <= last[n_]))
        self.asg = asg
        def sub(m):
            base = asg[m.group(1)]; a_, b_ = int(m.group(2)), int(m.group(3))
            return R("v", base + a_, b_ - a_)
        for k, t in self.items:
            if k == "ins": self.prog(_ph.sub(sub, t))
            elif k == "label": self.prog.label(t)
            elif k == "raw": self.prog.raw(t)
            elif k == "flush": self.prog.flush_state()
        if verbose:
            mx = max(sum(self.vrs[n_].n for n_ in first if first[n_] <= i <= last[n_]) for i in range(len(self.items)))
            print("max pressure", mx, "of", len(self.pool))
        return asg
```

```python
from asmlib import *
from layout import *
from sync import *
from small import srd
MF32 = "v_mfma_f32_16x16x32_bf16"
SC = " sc1"
SRD = "s[4:7]"

WOSPLIT = 4
CFG = {
    "qkv":  dict(WM=4, WN=1, NT=8, CK=4, korder="N", KS=16, resA=True,  ldb=8192, A=WS_H,  KTOT=16,  nb=512*4096*2),
    "wo":   dict(WM=4, WN=1, NT=8, CK=4, korder="N", KS=128//WOSPLIT, resA=False, ldb=1024, A=WS_O,  KTOT=128, nb=4096*512*2),
    "ffn1": dict(WM=4, WN=1, NT=8, CK=4, korder="N", KS=16, resA=True,  ldb=2752, A=WS_H2, KTOT=16,  nb=512*1376*2),
    "ffn2": dict(WM=2, WN=2, NT=2, CK=4, korder="D", KS=43, resA=False, ldb=1024, A=WS_F,  KTOT=43,  nb=1376*512*2),
}
GEMM_LDS = 3 * 32768

def body_gemm(p, N, kind):
    cfg = CFG[kind]
    WM, WN, NT, CK, KS, ldb, KTOT, nb = (cfg[k] for k in ("WM", "WN", "NT", "CK", "KS", "ldb", "KTOT", "nb"))
    resA = cfg["resA"]
    BN = WN * NT * 16; RB = BN * 2; CHB = CK * 32 * RB; NBUF = 3
    NDMA = CHB // 1024 // 4
    NCH = (KS + CK - 1) // CK
    RPI = 1024 // RB; LPR = RB // 16
    W = s(sWAVE)
    SBs = ["s[12:15]", "s[40:43]", "s[44:47]"]
    if kind == "qkv":
        for i, k in enumerate(("Wk", "Wv", "Wq")): p(f"s_load_dwordx2 {s(60+2*i,2)}, s[0:1], {KA[k]}")
    else:
        p(f"s_load_dwordx2 s[60:61], s[0:1], {KA[dict(wo='Wo', ffn1='w1', ffn2='w2')[kind]]}")
    if kind == "ffn1": p(f"s_load_dwordx2 s[66:67], s[0:1], {KA['b1']}")
    if kind == "ffn2":
        p(f"s_load_dwordx2 s[66:67], s[0:1], {KA['b2']}")
        p(f"s_load_dwordx2 s[68:69], s[0:1], {KA['out']}")
    p("v_and_b32 v2, 63, v0")
    if kind == "qkv":
        p("s_lshr_b32 s16, s2, 5"); p("s_and_b32 s17, s2, 31")
        p(f"s_lshl_b32 s9, s16, 3"); p(f"s_lshl_b32 s18, {W}, 1"); p("s_add_u32 s9, s9, s18")
        p("s_lshl_b32 s10, s17, 7"); p("s_mov_b32 s11, 0")
    elif kind == "wo":
        p("s_lshr_b32 s16, s2, 4"); p("s_bfe_u32 s17, s2, 0x20002"); p("s_and_b32 s19, s2, 3")
        p(f"s_lshl_b32 s9, s16, 3"); p(f"s_lshl_b32 s18, {W}, 1"); p("s_add_u32 s9, s9, s18")
        p("s_lshl_b32 s10, s17, 7"); p(f"s_mul_i32 s11, s19, {KS}")
    elif kind == "ffn1":
        p("s_mul_hi_u32 s16, s2, 0x1745d175"); p("s_mul_i32 s18, s16, 11"); p("s_sub_u32 s17, s2, s18")
        p(f"s_lshl_b32 s9, s16, 3"); p(f"s_lshl_b32 s18, {W}, 1"); p("s_add_u32 s9, s9, s18")
        p("s_lshl_b32 s10, s17, 7"); p("s_mov_b32 s11, 0")
    else:
        p("s_lshr_b32 s16, s2, 4"); p("s_and_b32 s17, s2, 7"); p("s_lshr_b32 s19, s2, 3")
        p(f"s_lshr_b32 s18, {W}, 1"); p("s_lshl_b32 s18, s18, 1")
        p("s_lshl_b32 s9, s19, 2"); p("s_add_u32 s9, s9, s18")
        p("s_lshl_b32 s10, s17, 6"); p("s_mov_b32 s11, 0")
    vL16, vn, vg = 3, 4, 5
    p(f"v_lshlrev_b32 {v(vL16)}, 4, v2")
    p(f"v_and_b32 {v(vn)}, 15, v2"); p(f"v_lshrrev_b32 {v(vg)}, 4, v2")
    assert (NDMA * RPI) % 16 == 0
    period = max(1, 16 // RPI)
    vD = 8
    assert period <= 4 and NDMA % period == 0
    p(f"v_lshrrev_b32 v6, {LPR.bit_length()-1}, v2")
    p(f"v_and_b32 v7, {LPR-1}, v2")
    p(f"s_mov_b32 s20, {ldb}")
    for q in range(period):
        d = vD + q
        p(f"v_add_u32 {v(d)}, {q*RPI}, v6")
        if cfg["korder"] == "N":
            assert RB == 256
            p(f"v_and_b32 v20, 3, {v(d)}"); p(f"v_bfe_u32 v21, {v(d)}, 3, 1"); p("v_lshl_or_b32 v20, v21, 2, v20")
        else:
            if RB == 256: p(f"v_and_b32 v20, 7, {v(d)}")
            else: p(f"v_bfe_u32 v20, {v(d)}, 1, 2")
        p("v_lshrrev_b32 v21, 1, v7"); p("v_xor_b32 v21, v21, v20"); p("v_and_b32 v22, 1, v7")
        p("v_lshl_or_b32 v21, v21, 1, v22")
        p(f"v_mul_lo_u32 {v(d)}, {v(d)}, s20")
        p(f"v_lshl_add_u32 {v(d)}, v21, 4, {v(d)}")
    vR = 12
    p("v_lshrrev_b32 v20, 2, v4")
    if cfg["korder"] == "N":
        p("v_lshl_add_u32 v21, v5, 3, v20")
        p("v_and_b32 v22, 1, v5"); p("v_lshl_or_b32 v22, v22, 2, v20")
        UOFF = 4 * RB
    else:
        p("v_lshl_add_u32 v21, v5, 2, v20")
        if RB == 256: p("v_and_b32 v22, 7, v21")
        else: p("v_bfe_u32 v22, v21, 1, 2")
        UOFF = 16 * RB
    p(f"v_mul_u32_u24 v21, {RB}, v21")
    p("v_and_b32 v23, 3, v2"); p("v_lshl_add_u32 v21, v23, 3, v21")
    if WN > 1:
        p(f"s_and_b32 s21, {W}, {WN-1}"); p(f"s_mul_i32 s21, s21, {NT}")
    for ct in range(NT):
        if WN > 1:
            p(f"s_add_u32 s22, s21, {ct}"); p("v_xor_b32 v23, s22, v22")
        else:
            p(f"v_xor_b32 v23, {ct}, v22")
        p(f"v_lshl_add_u32 {v(vR+ct)}, v23, 5, v21")
    vR2 = 24
    if 2 * CHB + CHB > 65536:
        for ct in range(NT): p(f"v_add_u32 {v(vR2+ct)}, 0x10000, {v(vR+ct)}")
    ACC = 32
    BF = ACC + 2 * NT * 4
    NBF = 8
    AR_ = BF + NBF * 4
    TMP = AR_ + (0 if resA else 2 * CK * 8)
    assert TMP + 40 <= 250, TMP
    p("s_waitcnt lgkmcnt(0)")
    nmat = 3 if kind == "qkv" else 1
    for m in range(nmat): srd(p, int(SBs[m][2:4]), 60 + 2 * m, nb)
    p(f"s_mul_i32 s28, {W}, {NDMA*RPI*ldb}")
    p("s_lshl_b32 s29, s10, 1"); p("s_add_u32 s28, s28, s29")
    p(f"s_mul_i32 s29, s11, {32*ldb}"); p("s_add_u32 s28, s28, s29")
    p(f"s_mul_i32 s30, {W}, {NDMA*1024}")
    chunks = [(m, c) for m in range(nmat) for c in range(NCH)]
    def dma(i):
        m, c = chunks[i]
        buf = i % NBUF
        p(f"s_add_u32 s31, s28, {c*CK*32*ldb}")
        p(f"s_add_u32 m0, s30, {buf*CHB}")
        for q in range(NDMA):
            if q:
                p("s_add_u32 m0, m0, 1024")
                if q % period == 0: p(f"s_add_u32 s31, s31, {period*RPI*ldb}")
            p(f"buffer_load_dwordx4 {v(vD + q % period)}, {SBs[m]}, s31 offen lds")
    marks = {}
    p("s_barrier")
    dma(0); marks[0] = p.vm_mark()
    if len(chunks) > 1: dma(1); marks[1] = p.vm_mark()
    assert kind == "qkv"
    wait_ge(p, "ws", (F_LN1, "s16"), 8)
    p(f"s_mul_i32 s23, s9, {KTOT*1024}")
    p("s_lshl_b32 s24, s11, 10"); p("s_add_u32 s23, s23, s24")
    p(f"s_add_u32 s23, s23, {cfg['A']}")
    p(f"s_add_u32 s24, s23, {KTOT*1024}")
    if resA:
        for t in range(16):
            for T in range(2):
                if t % 4 == 0 and t: p(f"s_add_u32 {s(23+T)}, {s(23+T)}, 4096")
                p(f"buffer_load_dwordx4 {a((T*16+t)*4, 4)}, {v(vL16)}, {SRD}, {s(23+T)} offen offset:{(t%4)*1024}{SC}")
    def lda(c):
        nks = min(CK, KS - c * CK)
        for t in range(nks):
            for T in range(2):
                p(f"buffer_load_dwordx4 {v(AR_ + (c%2)*CK*8 + (t*2+T)*4, 4)}, {v(vL16)}, {SRD}, {s(23+T)} offen offset:{t*1024}{SC}")
        p(f"s_add_u32 s23, s23, {CK*1024}"); p(f"s_add_u32 s24, s24, {CK*1024}")
    if not resA: lda(0)
    acc = lambda ct, T: ACC + (ct*2+T)*4
    def compute(i, vtype):
        m, c = chunks[i]
        nks = min(CK, KS - c * CK)
        boff = (i % NBUF) * CHB
        seq = [(t, ct) for t in range(nks) for ct in range(NT)]
        def rd(k):
            t, ct = seq[k]; r = BF + (k % NBF) * 4
            off = boff + t * 32 * RB
            for u in range(2):
                o = off + u * UOFF
                if o < 65536: p(f"ds_read_b64_tr_b16 {v(r+2*u,2)}, {v(vR+ct)} offset:{o}")
                else: p(f"ds_read_b64_tr_b16 {v(r+2*u,2)}, {v(vR2+ct)} offset:{o-65536}")
        LA = NBF - 2
        for k in range(min(LA, len(seq))): rd(k)
        for k, (t, ct) in enumerate(seq):
            r = BF + (k % NBF) * 4
            for T in range(2):
                a_ = a((T*16 + c*CK + t)*4, 4) if resA else v(AR_ + (c%2)*CK*8 + (t*2+T)*4, 4)
                ac = v(acc(ct, T), 4)
                cin = "0" if (c == 0 and t == 0) else ac
                if vtype: p(f"{MF32} {ac}, {a_}, {v(r,4)}, {cin}")
                else:     p(f"{MF32} {ac}, {v(r,4)}, {a_}, {cin}")
                if T == 0 and k + LA < len(seq): rd(k + LA)
    def epi_kq(dst):
        p("s_lshr_b32 s36, s9, 1"); p("s_lshl_b32 s36, s36, 5"); p("s_add_u32 s36, s36, s17"); p("s_lshl_b32 s36, s36, 13")
        p(f"s_add_u32 s36, s36, {dst}")
        for T in range(2):
            for t in range(4):
                pk = TMP + 4 * ((T*4+t) % 4)
                a0, a1 = acc(2*t, T), acc(2*t+1, T)
                p(f"v_cvt_pk_bf16_f32 {v(pk)}, {v(a0)}, {v(a0+1)}"); p(f"v_cvt_pk_bf16_f32 {v(pk+1)}, {v(a0+2)}, {v(a0+3)}")
                p(f"v_cvt_pk_bf16_f32 {v(pk+2)}, {v(a1)}, {v(a1+1)}"); p(f"v_cvt_pk_bf16_f32 {v(pk+3)}, {v(a1+2)}, {v(a1+3)}")
                p(f"buffer_store_dwordx4 {v(pk,4)}, {v(vL16)}, {SRD}, s36 offen offset:{t*1024}{SC}")
            if T == 0: p("s_add_u32 s36, s36, 4096")
    def epi_v():
        p("s_lshr_b32 s36, s9, 1"); p("s_lshl_b32 s36, s36, 5"); p("s_add_u32 s36, s36, s17"); p("s_lshl_b32 s36, s36, 13")
        p(f"s_add_u32 s36, s36, {WS_VX}")
        p("v_and_b32 v20, 1, v4"); p("v_lshlrev_b32 v20, 10, v20")
        p("v_lshl_add_u32 v20, v5, 8, v20")
        p("v_lshrrev_b32 v21, 1, v4"); p("v_lshl_add_u32 v20, v21, 4, v20")
        for ct in range(8):
            pk = TMP + 4 * (ct % 4)
            a0, a1 = acc(ct, 0), acc(ct, 1)
            p(f"v_cvt_pk_bf16_f32 {v(pk)}, {v(a0)}, {v(a0+1)}"); p(f"v_cvt_pk_bf16_f32 {v(pk+1)}, {v(a0+2)}, {v(a0+3)}")
            p(f"v_cvt_pk_bf16_f32 {v(pk+2)}, {v(a1)}, {v(a1+1)}"); p(f"v_cvt_pk_bf16_f32 {v(pk+3)}, {v(a1+2)}, {v(a1+3)}")
            if ct == 4: p("s_add_u32 s36, s36, 4096")
            p(f"buffer_store_dwordx4 {v(pk,4)}, v20, {SRD}, s36 offen offset:{((ct//2)%2)*2048 + (ct%2)*128}{SC}")
    for i, (m, c) in enumerate(chunks):
        p.vm_wait(marks[i])
        p("s_barrier")
        if kind == "qkv" and i == 10:
            signal(p, "ws", (F_KV, "s16"), drain=False)
        if i + 2 < len(chunks): dma(i + 2); marks[i + 2] = p.vm_mark()
        if not resA and c + 1 < NCH: lda(c + 1)
        compute(i, kind == "qkv" and m == 1)
        if kind == "qkv" and c == NCH - 1:
            if m == 0: epi_kq(WS_KX)
            elif m == 1: epi_v()
            else: epi_kq(WS_QX)
    if kind == "qkv":
        signal(p, "ws", (F_Q, "s16"))
```

```python
from asmlib import *
from layout import *
from sync import *
from small import srd
MF32 = "v_mfma_f32_16x16x32_bf16"
SC = " sc1"
SRD = "s[4:7]"
WOSPLIT = 8

CFG = {
    "wo":   dict(TA=2, NT=8, korder="N", KS=16, ldb=1024, A=WS_O,  KTOT=128, nb=4096*512*2, nrole=32),
    "ffn1": dict(TA=2, NT=8, korder="N", KS=16, ldb=2752, A=WS_H2, KTOT=16,  nb=512*1376*2, nrole=11),
    "ffn2": dict(TA=1, NT=2, korder="D", KS=43, ldb=1024, A=WS_F,  KTOT=43,  nb=1376*512*2, nrole=32),
}

def role_gemm(p, N, kind):
    cfg = CFG[kind]
    TA, NT, KS, ldb, KTOT, nb = (cfg[k] for k in ("TA", "NT", "KS", "ldb", "KTOT", "nb"))
    BN = NT * 16; RB = BN * 2
    ROWS = ((KS * 32 + 63) // 64) * 64
    RPI = 1024 // RB; LPR = RB // 16
    NI = ROWS * RB // 1024
    W = s(sWAVE)
    p(f"s_load_dwordx2 s[60:61], s[0:1], {KA[dict(wo='Wo', ffn1='w1', ffn2='w2')[kind]]}")
    if kind == "ffn1": p(f"s_load_dwordx2 s[66:67], s[0:1], {KA['b1']}")
    if kind == "ffn2":
        p(f"s_load_dwordx2 s[66:67], s[0:1], {KA['b2']}")
        p(f"s_load_dwordx2 s[68:69], s[0:1], {KA['out']}")
    p("v_and_b32 v2, 63, v0")
    if kind == "wo":
        p("s_lshr_b32 s17, s2, 3"); p("s_and_b32 s19, s2, 7")
        p("s_lshl_b32 s10, s17, 7"); p(f"s_mul_i32 s11, s19, {KS}")
    elif kind == "ffn1":
        p("s_lshl_b32 s10, s2, 7"); p("s_mov_b32 s11, 0")
    else:
        p("s_lshr_b32 s17, s2, 1"); p("s_and_b32 s19, s2, 1")
        p("s_lshl_b32 s10, s17, 5"); p("s_mov_b32 s11, 0")
    vL16, vn, vg = 3, 4, 5
    p(f"v_lshlrev_b32 {v(vL16)}, 4, v2")
    p(f"v_and_b32 {v(vn)}, 15, v2"); p(f"v_lshrrev_b32 {v(vg)}, 4, v2")
    def fcode(dst, rowreg):
        if cfg["korder"] == "N":
            p(f"v_and_b32 {dst}, 3, {rowreg}"); p(f"v_bfe_u32 v21, {rowreg}, 3, 1"); p(f"v_lshl_or_b32 {dst}, v21, 2, {dst}")
        else:
            p(f"v_bfe_u32 {dst}, {rowreg}, 2, 1")
    period = max(1, 16 // RPI)
    vD = 8
    p(f"v_lshrrev_b32 v6, {LPR.bit_length()-1}, v2")
    p(f"v_and_b32 v7, {LPR-1}, v2")
    p(f"s_mov_b32 s20, {ldb}")
    for q in range(period):
        d = vD + q
        p(f"v_add_u32 {v(d)}, {q*RPI}, v6")
        fcode("v20", v(d))
        p("v_lshrrev_b32 v21, 1, v7"); p("v_xor_b32 v21, v21, v20"); p("v_and_b32 v22, 1, v7")
        p("v_lshl_or_b32 v21, v21, 1, v22")
        p(f"v_mul_lo_u32 {v(d)}, {v(d)}, s20")
        p(f"v_lshl_add_u32 {v(d)}, v21, 4, {v(d)}")
    vR = 12; vR2 = 24
    p("v_lshrrev_b32 v20, 2, v4")
    if cfg["korder"] == "N":
        p("v_lshl_add_u32 v23, v5, 3, v20"); UOFF = 4 * RB
    else:
        p("v_lshl_add_u32 v23, v5, 2, v20"); UOFF = 16 * RB
    fcode("v22", "v23")
    p(f"v_mul_u32_u24 v21, {RB}, v23")
    p("v_and_b32 v23, 3, v2"); p("v_lshl_add_u32 v21, v23, 3, v21")
    for ct in range(NT):
        p(f"v_xor_b32 v23, {ct}, v22")
        p(f"v_lshl_add_u32 {v(vR+ct)}, v23, 5, v21")
        p(f"v_add_u32 {v(vR2+ct)}, 0x10000, {v(vR+ct)}")
    p("s_waitcnt lgkmcnt(0)")
    srd(p, 12, 60, nb)
    ngrp = NI // period
    assert NI % period == 0
    p("s_lshl_b32 s29, s10, 1"); p(f"s_mul_i32 s28, s11, {32*ldb}"); p("s_add_u32 s28, s28, s29")
    p(f"s_mul_i32 s29, {W}, {period*RPI*ldb}"); p("s_add_u32 s28, s28, s29")
    p(f"s_mul_i32 s30, {W}, {period*1024}")
    p("s_barrier")
    for gi in range((ngrp + 3) // 4):
        if (gi * 4 + 3) >= ngrp:
            p(f"s_cmp_ge_u32 {W}, {ngrp - gi*4}"); p(f"s_cbranch_scc1 L_{N}_dmaend")
        p(f"s_add_u32 s31, s28, {gi*4*period*RPI*ldb}")
        p(f"s_add_u32 m0, s30, {gi*4*period*1024}")
        for q in range(period):
            if q: p("s_add_u32 m0, m0, 1024")
            p(f"buffer_load_dwordx4 {v(vD+q)}, s[12:15], s31 offen lds")
    p.label(f"L_{N}_dmaend")
    p.flush_state()
    ACC = 32
    BF = ACC + TA * NT * 4
    NBF = 8
    TMP = BF + NBF * 4
    acc = lambda ct, T: ACC + (ct*TA+T)*4
    if kind == "ffn1":
        srd(p, 48, 66, 1376 * 2)
        p("v_lshlrev_b32 v20, 3, v5"); p("s_lshl_b32 s37, s10, 1")
        BI = TMP + 16
        for ct in range(NT): p(f"buffer_load_dwordx2 {v(BI+2*ct,2)}, v20, s[48:51], s37 offen offset:{ct*32}")
    if kind == "ffn2":
        srd(p, 48, 66, 512 * 2); srd(p, 52, 68, 2048 * 512 * 2)
        p("v_lshlrev_b32 v20, 3, v5"); p("s_lshl_b32 s37, s10, 1")
        BI = TMP + 16
        for ct in range(NT): p(f"buffer_load_dwordx2 {v(BI+2*ct,2)}, v20, s[48:51], s37 offen offset:{ct*32}")
    p("s_waitcnt vmcnt(0)")
    p("s_barrier")
    p.flush_state()
    p("s_mov_b32 s16, 0")
    p.label(f"L_{N}_loop")
    if kind == "wo": wait_ge(p, "ws", (F_ATT, "s16"), 32)
    elif kind == "ffn1": wait_ge(p, "ws", (F_LN2, "s16"), 32)
    else: wait_ge(p, "ws", (F_FFN1, "s16"), 11)
    p.flush_state()
    if TA == 2: p(f"s_lshl_b32 s9, s16, 3"); p(f"s_lshl_b32 s18, {W}, 1"); p("s_add_u32 s9, s9, s18")
    else:       p(f"s_lshl_b32 s9, s16, 3"); p("s_lshl_b32 s18, s19, 2"); p("s_add_u32 s9, s9, s18"); p(f"s_add_u32 s9, s9, {W}")
    p(f"s_mul_i32 s23, s9, {KTOT*1024}"); p("s_lshl_b32 s24, s11, 10"); p("s_add_u32 s23, s23, s24")
    p(f"s_add_u32 s23, s23, {cfg['A']}"); p(f"s_add_u32 s24, s23, {KTOT*1024}")
    for t in range(KS):
        for T in range(TA):
            if t % 4 == 0 and t: p(f"s_add_u32 {s(23+T)}, {s(23+T)}, 4096")
            p(f"buffer_load_dwordx4 {a((T*KS+t)*4, 4)}, {v(vL16)}, {SRD}, {s(23+T)} offen offset:{(t%4)*1024}{SC}")
    if kind == "ffn2":
        p("v_lshlrev_b32 v21, 4, v5"); p("s_lshl_b32 s38, s10, 2"); p(f"s_add_u32 s38, s38, {WS_MOD + 5*2048}")
        p("v_lshlrev_b32 v22, 11, v4"); p("v_lshl_add_u32 v22, v5, 4, v22")
        p("s_lshl_b32 s39, s9, 15"); p("s_lshl_b32 s56, s10, 2"); p("s_add_u32 s39, s39, s56"); p(f"s_add_u32 s39, s39, {WS_X1}")
        for ct in range(NT):
            p(f"buffer_load_dwordx4 {v(TMP+24+4*ct,4)}, v21, {SRD}, s38 offen offset:{ct*64}{SC}")
            p(f"buffer_load_dwordx4 {v(TMP+32+4*ct,4)}, v22, {SRD}, s39 offen offset:{ct*64}{SC}")
    seq = [(t, ct) for t in range(KS) for ct in range(NT)]
    def rd(k):
        t, ct = seq[k]; r = BF + (k % NBF) * 4
        for u in range(2):
            o = t * 32 * RB + u * UOFF
            if o < 65536: p(f"ds_read_b64_tr_b16 {v(r+2*u,2)}, {v(vR+ct)} offset:{o}")
            else: p(f"ds_read_b64_tr_b16 {v(r+2*u,2)}, {v(vR2+ct)} offset:{o-65536}")
    LA = NBF - 2
    for k in range(LA): rd(k)
    for k, (t, ct) in enumerate(seq):
        r = BF + (k % NBF) * 4
        for T in range(TA):
            ac = v(acc(ct, T), 4)
            p(f"{MF32} {ac}, {v(r,4)}, {a((T*KS+t)*4, 4)}, {'0' if t == 0 else ac}")
            if T == 0 and k + LA < len(seq): rd(k + LA)
    if kind == "wo":
        p("s_lshl_b32 s36, s19, 22"); p("s_lshl_b32 s37, s9, 15"); p("s_add_u32 s36, s36, s37")
        p("s_lshl_b32 s37, s10, 2"); p("s_add_u32 s36, s36, s37"); p(f"s_add_u32 s36, s36, {WS_PW}")
        p("v_lshlrev_b32 v20, 11, v4"); p("v_lshl_add_u32 v20, v5, 4, v20")
        for T in range(2):
            for ct in range(NT):
                p(f"buffer_store_dwordx4 {v(acc(ct,T),4)}, v20, {SRD}, s36 offen offset:{ct*64}{SC}")
            if T == 0: p("s_add_u32 s36, s36, 32768")
        signal(p, "ws", (F_WO, "s16"))
    elif kind == "ffn1":
        p(f"s_mul_i32 s36, s9, {43*1024}"); p("s_lshr_b32 s38, s10, 5"); p("s_lshl_b32 s39, s38, 10")
        p("s_add_u32 s36, s36, s39"); p(f"s_add_u32 s36, s36, {WS_F}")
        p("s_mov_b32 s52, 0x3d372713"); p("s_mov_b32 s53, 0x40135761")
        for T in range(2):
            for u in range(4):
                pk = TMP + 4 * (u % 2)
                for half, ct in enumerate((2*u, 2*u+1)):
                    a0 = acc(ct, T)
                    ts = [v(TMP + 8 + j) for j in range(4)]
                    for j in range(4):
                        b = v(BI + 2*ct + j//2)
                        if j % 2 == 0: p(f"v_lshlrev_b32 {ts[j]}, 16, {b}")
                        else: p(f"v_and_b32 {ts[j]}, 0xffff0000, {b}")
                    for j in range(4): p(f"v_add_f32 {v(a0+j)}, {v(a0+j)}, {ts[j]}")
                    for j in range(4): p(f"v_mul_f32 {ts[j]}, {v(a0+j)}, {v(a0+j)}")
                    for j in range(4): p(f"v_fma_f32 {ts[j]}, {ts[j]}, s52, 1.0")
                    for j in range(4): p(f"v_mul_f32 {ts[j]}, {ts[j]}, {v(a0+j)}")
                    for j in range(4): p(f"v_mul_f32 {ts[j]}, s53, {ts[j]}")
                    for j in range(4): p(f"v_exp_f32 {ts[j]}, -{ts[j]}")
                    for j in range(4): p(f"v_add_f32 {ts[j]}, 1.0, {ts[j]}")
                    for j in range(4): p(f"v_rcp_f32 {ts[j]}, {ts[j]}")
                    for j in range(4): p(f"v_mul_f32 {v(a0+j)}, {v(a0+j)}, {ts[j]}")
                    p(f"v_cvt_pk_bf16_f32 {v(pk+2*half)}, {v(a0)}, {v(a0+1)}")
                    p(f"v_cvt_pk_bf16_f32 {v(pk+2*half+1)}, {v(a0+2)}, {v(a0+3)}")
                p(f"s_add_u32 s39, s38, {u}"); p("s_cmp_ge_u32 s39, 43"); p(f"s_cbranch_scc1 L_{N}_sk{T}{u}")
                p(f"buffer_store_dwordx4 {v(pk,4)}, {v(vL16)}, {SRD}, s36 offen offset:{u*1024}{SC}")
                p.label(f"L_{N}_sk{T}{u}")
            if T == 0: p(f"s_add_u32 s36, s36, {43*1024}")
        signal(p, "ws", (F_FFN1, "s16"))
    else:
        p("v_lshlrev_b32 v23, 10, v4"); p("v_lshl_add_u32 v23, v5, 3, v23")
        p("s_lshl_b32 s57, s9, 14"); p("s_lshl_b32 s56, s10, 1"); p("s_add_u32 s57, s57, s56")
        for ct in range(NT):
            a0 = acc(ct, 0)
            for j in range(4):
                b = v(BI + 2*ct + j//2); t1 = v(TMP + 8)
                if j % 2 == 0: p(f"v_lshlrev_b32 {t1}, 16, {b}")
                else: p(f"v_and_b32 {t1}, 0xffff0000, {b}")
                p(f"v_add_f32 {v(a0+j)}, {v(a0+j)}, {t1}")
                p(f"v_fma_f32 {v(a0+j)}, {v(a0+j)}, {v(TMP+24+4*ct+j)}, {v(TMP+32+4*ct+j)}")
            p(f"v_cvt_pk_bf16_f32 {v(TMP+10)}, {v(a0)}, {v(a0+1)}"); p(f"v_cvt_pk_bf16_f32 {v(TMP+11)}, {v(a0+2)}, {v(a0+3)}")
            p(f"buffer_store_dwordx2 {v(TMP+10,2)}, v23, s[52:55], s57 offen offset:{ct*32}")
    p.trace_point(N) if hasattr(p, "trace_point") else None
    p("s_add_u32 s16, s16, 1"); p("s_cmp_lt_u32 s16, 16"); p(f"s_cbranch_scc1 L_{N}_loop")
    p("s_waitcnt vmcnt(0)")

def role_ln2(p, N):
    W = s(sWAVE)
    p(f"s_load_dwordx2 s[12:13], s[0:1], {KA['x']}")
    p("v_and_b32 v2, 63, v0")
    p("s_waitcnt lgkmcnt(0)")
    srd(p, 16, 12, 2048 * 512 * 2)
    p("v_lshlrev_b32 v5, 4, v2")
    p("v_lshlrev_b32 v6, 5, v2")
    wait_ge(p, "dbg", D_MOD, 48)
    p.flush_state()
    GA, SH, SCL = 16, 24, 32
    for reg, row in ((GA, 2), (SH, 3), (SCL, 4)):
        p(f"s_mov_b32 s20, {WS_MOD + row*2048}")
        for hf in range(2): p(f"buffer_load_dwordx4 {v(reg+4*hf,4)}, v6, {SRD}, s20 offen offset:{hf*16}{SC}")
    p("v_lshrrev_b32 v7, 2, v2"); p("v_lshlrev_b32 v7, 10, v7"); p("v_and_b32 v8, 3, v2"); p("v_lshl_add_u32 v7, v8, 8, v7")
    p("s_mov_b32 s30, 0")
    p.label(f"L_{N}_loop")
    p("s_lshl_b32 s9, s30, 7"); p("s_lshl_b32 s10, s2, 2"); p("s_add_u32 s9, s9, s10"); p(f"s_add_u32 s9, s9, {W}")
    p("s_lshl_b32 s10, s9, 10")
    p("buffer_load_dwordx4 v[8:11], v5, s[16:19], s10 offen")
    wait_ge(p, "ws", (F_WO, "s30"), 32)
    p("s_lshl_b32 s11, s9, 11")
    PB = 64
    for sp in range(WOSPLIT):
        p(f"s_add_u32 s23, s11, {WS_PW + sp * 4 * MB}")
        for hf in range(2): p(f"buffer_load_dwordx4 {v(PB+8*sp+4*hf,4)}, v6, {SRD}, s23 offen offset:{hf*16}{SC}")
    X = 40
    for d in range(4):
        p(f"v_lshlrev_b32 {v(X+2*d)}, 16, {v(8+d)}"); p(f"v_and_b32 {v(X+2*d+1)}, 0xffff0000, {v(8+d)}")
    for sp in range(1, WOSPLIT):
        for e in range(8): p(f"v_add_f32 {v(PB+e)}, {v(PB+e)}, {v(PB+8*sp+e)}")
    for e in range(8): p(f"v_fmac_f32 {v(X+e)}, {v(GA+e)}, {v(PB+e)}")
    p(f"s_add_u32 s23, s11, {WS_X1}")
    for hf in range(2): p(f"buffer_store_dwordx4 {v(X+4*hf,4)}, v6, {SRD}, s23 offen offset:{hf*16}{SC}")
    def wsum(r):
        for sh in (1, 2, 4, 8):
            p(f"v_add_f32_dpp {r}, {r}, {r} row_ror:{sh} row_mask:0xf bank_mask:0xf")
        p(f"v_mov_b32 v12, {r}"); p(f"v_permlane16_swap_b32 {r}, v12"); p(f"v_add_f32 {r}, {r}, v12")
        p(f"v_mov_b32 v12, {r}"); p(f"v_permlane32_swap_b32 {r}, v12"); p(f"v_add_f32 {r}, {r}, v12")
    p(f"v_add_f32 v13, {v(X)}, {v(X+1)}")
    for e in range(2, 8): p(f"v_add_f32 v13, v13, {v(X+e)}")
    wsum("v13")
    p("v_mul_f32 v13, 0x3b000000, v13")
    for e in range(8): p(f"v_sub_f32 {v(X+e)}, {v(X+e)}, v13")
    p(f"v_mul_f32 v14, {v(X)}, {v(X)}")
    for e in range(1, 8): p(f"v_fmac_f32 v14, {v(X+e)}, {v(X+e)}")
    wsum("v14")
    p("v_mov_b32 v15, 0x3727c5ac"); p("v_fmac_f32 v15, 0x3b000000, v14"); p("v_rsq_f32 v15, v15")
    for e in range(8):
        p(f"v_mul_f32 {v(X+e)}, {v(X+e)}, v15")
        p(f"v_fma_f32 {v(X+e)}, {v(X+e)}, {v(SCL+e)}, {v(SH+e)}")
    for d in range(4): p(f"v_cvt_pk_bf16_f32 {v(48+d)}, {v(X+2*d)}, {v(X+2*d+1)}")
    p("s_lshr_b32 s12, s9, 4"); p("s_lshl_b32 s12, s12, 14"); p("s_and_b32 s13, s9, 15"); p("s_lshl_b32 s13, s13, 4")
    p("s_add_u32 s12, s12, s13"); p(f"s_add_u32 s12, s12, {WS_H2}")
    p(f"buffer_store_dwordx4 v[48:51], v7, {SRD}, s12 offen{SC}")
    signal(p, "ws", (F_LN2, "s30"))
    p.trace_point(N) if hasattr(p, "trace_point") else None
    p("s_add_u32 s30, s30, 1"); p("s_cmp_lt_u32 s30, 16"); p(f"s_cbranch_scc1 L_{N}_loop")
```

```python
MB = 1 << 20
WS_BYTES = 256 * MB
WS_H   = 0
WS_MOD = 2 * MB
WS_P   = 3 * MB
WS_M   = 3 * MB + 512 * 1024
WS_FLAG = 3 * MB + 768 * 1024
WS_KM  = 4 * MB
WS_VM  = 8 * MB
WS_KX  = 16 * MB
WS_VX  = 32 * MB
WS_QX  = 48 * MB
WS_O   = 64 * MB
WS_PW  = 128 * MB
WS_X1  = 96 * MB
WS_H2  = 100 * MB
WS_F   = 104 * MB
WS_DBG = 120 * MB

KA = dict(x=0, mem0=8, Wq=16, Wk=24, Wv=32, Wo=40, seglen=48, Bx=56, w1=64, b1=72, w2=80, b2=88, c=96, wmod=104, out=112, dbg=120, ws=128)

def kd(name, vgpr=512, accum=256, sgpr=102, wgy=False):
    y = "  .amdhsa_system_sgpr_workgroup_id_y 1\n" if wgy else ""
    return f""".section .rodata,"a"
.p2align 6
.amdhsa_kernel {name}
  .amdhsa_next_free_vgpr {vgpr}
  .amdhsa_next_free_sgpr {sgpr}
  .amdhsa_accum_offset {accum}
  .amdhsa_group_segment_fixed_size 0
  .amdhsa_kernarg_size 136
  .amdhsa_user_sgpr_count 2
  .amdhsa_user_sgpr_kernarg_segment_ptr 1
  .amdhsa_system_sgpr_workgroup_id_x 1
{y}.end_amdhsa_kernel
.text
"""
```

```python
from asmlib import *
from layout import *
from sync import D_RINIT, D_MOD, D_ABORT, F_KV, F_REC, F_RECF

L_BUF  = 0
L_MEM  = 32768
L_OI   = 40960
HS     = 1088
L_QI   = 45056
L_KI   = L_QI + 2176
L_SEL  = 49664
L_ONE, L_HALF, L_ZERO = L_SEL + 1024, L_SEL + 2048, L_SEL + 3072
L_WL   = L_SEL + 4096
LDS_BYTES = L_WL + 4 * 24576

vL16, vIdx, vA, vQw, vQr, vH1s, vH1l, vPub, vBuf = range(9)
RES = 96
AWV, AWO = 0, 128

sH, sW, sStep = 8, 9, 10
sMpoll, sMpub, sMrst = 12, 13, 14
sSpin = 15
sPst = 16
sPld = 18
sKX, sVX, sKM, sVM = 24, 25, 26, 27
sM0K, sM0V = 28, 29
sFirst = 30
sWL = 31
sPubMask = 32
sO = 34
sC = 38
sSRDW = 40
sT0, sT1, sT2, sT3 = 44, 45, 46, 47
sW2k = 50
sKVok = 51
SPIN_MAX = 100000
NST = 16

def wl_off(t, m): return (t * 2 + m) * 2048
def wres(t, m):
    assert t >= 6
    return RES + ((t - 6) * 2 + m) * 8
def mem_col_scalar(j, d):
    return 128 * (j // 8) + 64 * ((j // 4) % 2) + 8 * (j % 4) + 32 * (d % 2) + 2 * ((d % 4) // 2)

def gen_rec(name, stamps=False, st_mod="", nsteps=64, opt=None, prog=None):
    opt = opt or {}
    mega = prog is not None
    NHEAD_THR = 33 if opt.get("force_slow") else 32
    p = prog if mega else Prog()
    SRD = "s[4:7]"
    DS = " sc1" if mega else ""
    if not mega: p.raw(f".p2align 8\n.type {name},@function\n{name}:")
    if mega:
        p(f"s_load_dwordx2 s[56:57], s[0:1], {KA['dbg']}")
    else:
        p(f"s_cmp_ge_u32 s2, 256")
        p(f"s_cbranch_scc1 L_{name}_end")
        p(f"s_load_dwordx2 s[56:57], s[0:1], {KA['dbg']}")
        p("s_getreg_b32 s3, hwreg(HW_REG_XCC_ID)")
        p("s_and_b32 s3, s3, 15")
        if opt.get("fake_xcc"): p(f"s_and_b32 s3, s2, {opt['fake_xcc']-1}")
        p("v_lshrrev_b32 v1, 6, v0")
        p("v_readfirstlane_b32 s9, v1")
        p("s_waitcnt lgkmcnt(0)")
        p("s_cmp_lg_u32 s9, 0")
        p(f"s_cbranch_scc1 L_{name}_el_wait")
        p("s_mov_b64 exec, 1")
        p("v_mov_b32 v2, 1")
        p("s_lshl_b32 s10, s3, 2")
        p("v_mov_b32 v3, s10")
        p("global_atomic_add v4, v3, v2, s[56:57] sc0")
        p("s_waitcnt vmcnt(0)")
        p("v_mov_b32 v3, 64")
        p("global_atomic_add v5, v3, v2, s[56:57] sc0")
        p("s_waitcnt vmcnt(0)")
        p("v_readfirstlane_b32 s10, v4")
        p("s_cmp_lg_u32 s3, 0")
        p(f"s_cbranch_scc1 L_{name}_el_other")
        p(f"s_cmp_lt_u32 s10, {NHEAD_THR}")
        p(f"s_cbranch_scc1 L_{name}_el_pub")
        p.label(f"L_{name}_el_other")
        p(f"s_mov_b32 s11, {SPIN_MAX}")
        p.label(f"L_{name}_el_spin")
        p("v_mov_b32 v3, 64")
        p("global_load_dword v5, v3, s[56:57] sc1")
        p("s_waitcnt vmcnt(0)")
        p("v_mov_b32 v3, 0")
        p("global_load_dword v4, v3, s[56:57] sc1")
        p("s_waitcnt vmcnt(0)")
        p("v_readfirstlane_b32 s12, v4")
        p("v_readfirstlane_b32 s13, v5")
        p("s_mov_b32 s10, -1")
        p(f"s_cmp_ge_u32 s12, {NHEAD_THR}")
        p(f"s_cbranch_scc1 L_{name}_el_pub")
        p("s_cmp_ge_u32 s13, 256")
        p(f"s_cbranch_scc1 L_{name}_el_fb")
        p("s_sleep 8")
        p("s_sub_u32 s11, s11, 1")
        p(f"s_cbranch_scc0 L_{name}_el_spin")
        p(f"s_branch L_{name}_el_pub")
        p.label(f"L_{name}_el_fb")
        p("v_mov_b32 v3, 68")
        p("global_atomic_add v4, v3, v2, s[56:57] sc0")
        p("s_waitcnt vmcnt(0)")
        p("v_readfirstlane_b32 s10, v4")
        p("s_add_u32 s10, s10, s12")
        p.label(f"L_{name}_el_pub")
        p("v_mov_b32 v2, s10")
        p("v_mov_b32 v3, 0")
        p("ds_write_b32 v3, v2")
        p("s_mov_b64 exec, -1")
        p.label(f"L_{name}_el_wait")
        p("s_waitcnt vmcnt(0) lgkmcnt(0)")
        p("s_barrier")
        p("v_mov_b32 v3, 0")
        p("ds_read_b32 v2, v3")
        p("s_waitcnt lgkmcnt(0)")
        p(f"v_readfirstlane_b32 {s(sH)}, v2")
        p("s_barrier")
        p(f"s_cmp_ge_u32 {s(sH)}, 32")
        p(f"s_cbranch_scc1 L_{name}_end")
        p.flush_state()
    if not stamps: p.raw("    s_memrealtime s[96:97]")
    p(f"s_load_dwordx2 s[4:5], s[0:1], {KA['ws']}")
    p(f"s_load_dwordx2 s[60:61], s[0:1], {KA['Wq']}")
    p(f"s_load_dwordx2 s[62:63], s[0:1], {KA['Wk']}")
    p(f"s_load_dwordx2 s[64:65], s[0:1], {KA['Wv']}")
    p(f"s_load_dwordx2 s[66:67], s[0:1], {KA['Wo']}")
    p(f"s_load_dwordx2 s[68:69], s[0:1], {KA['mem0']}")
    p(f"v_mov_b32 v18, v0")
    p(f"v_lshrrev_b32 v12, 6, v0")
    p(f"v_readfirstlane_b32 {s(sW)}, v12")
    p(f"v_and_b32 v13, 63, v0")
    p(f"s_waitcnt lgkmcnt(0)")
    p(f"s_mov_b32 s6, {WS_BYTES}")
    p(f"s_mov_b32 s7, 0x00020000")
    p(f"v_and_b32 v14, 15, v13")
    p(f"v_lshrrev_b32 v15, 4, v13")
    p(f"v_lshlrev_b32 {v(vL16)}, 4, v13")
    p(f"v_mov_b32 v16, 0x8888")
    p(f"v_mov_b32 v17, 0xdddd")
    p(f"v_cmp_gt_u32 vcc, 8, v14")
    p(f"v_cndmask_b32 {v(vIdx)}, v17, v16, vcc")
    p(f"v_and_b32 v16, 7, v14")
    p(f"v_lshlrev_b32 v16, 4, v16")
    p(f"v_lshl_add_u32 {v(vA)}, v15, 7, v16")
    p(f"s_mul_i32 {s(sWL)}, {s(sW)}, 24576")
    p(f"s_add_u32 {s(sWL)}, {s(sWL)}, {L_WL}")
    p(f"v_and_b32 v16, 1, v15")
    p(f"v_mul_u32_u24 v16, {HS}, v16")
    p(f"v_lshrrev_b32 v17, 1, v15")
    p(f"v_lshl_add_u32 v17, v14, 1, v17")
    p(f"s_lshl_b32 {s(sT0)}, {s(sW)}, 5")
    p(f"v_add_u32 v17, {s(sT0)}, v17")
    p(f"v_lshl_add_u32 v16, v17, 3, v16")
    p(f"v_add_u32 {v(vQw)}, {L_QI}, v16")
    p(f"v_and_b32 v16, 1, v13")
    p(f"v_mul_u32_u24 v16, {HS}, v16")
    p(f"v_lshrrev_b32 v17, 2, v14")
    p(f"v_lshl_add_u32 v17, v15, 2, v17")
    p(f"v_lshl_add_u32 v16, v17, 3, v16")
    p(f"v_add_u32 {v(vQr)}, {L_QI}, v16")
    p(f"v_lshrrev_b32 v16, 2, v14")
    p(f"s_lshl_b32 {s(sT0)}, {s(sW)}, 3")
    p(f"v_add_u32 v16, {s(sT0)}, v16")
    p(f"v_lshlrev_b32 v16, 13, v16")
    p(f"v_lshl_add_u32 v16, v15, 11, v16")
    p(f"v_and_b32 v17, 3, v14")
    p(f"v_lshl_add_u32 v16, v17, 4, v16")
    p(f"s_and_b32 {s(sT0)}, {s(sH)}, 1")
    p(f"s_lshl_b32 {s(sT0)}, {s(sT0)}, 10")
    p(f"s_lshr_b32 {s(sT1)}, {s(sH)}, 1")
    p(f"s_lshl_b32 {s(sT1)}, {s(sT1)}, 6")
    p(f"s_add_u32 {s(sT0)}, {s(sT0)}, {s(sT1)}")
    p(f"v_add_u32 {v(vH1s)}, {s(sT0)}, v16")
    p(f"s_lshl_b32 {s(sT0)}, {s(sH)}, 13")
    p(f"s_lshl_b32 {s(sT1)}, {s(sW)}, 11")
    p(f"s_add_u32 {s(sT0)}, {s(sT0)}, {s(sT1)}")
    p(f"v_add_u32 {v(vH1l)}, {s(sT0)}, {v(vL16)}")
    p(f"v_lshlrev_b32 v16, 4, v15")
    p(f"v_and_b32 v17, 3, v13")
    p(f"v_lshl_add_u32 v16, v17, 2, v16")
    p(f"s_lshr_b32 {s(sT0)}, {s(sH)}, 1")
    p(f"s_lshl_b32 {s(sT0)}, {s(sT0)}, 9")
    p(f"s_and_b32 {s(sT1)}, {s(sH)}, 1")
    p(f"s_lshl_b32 {s(sT1)}, {s(sT1)}, 8")
    p(f"s_add_u32 {s(sT0)}, {s(sT0)}, {s(sT1)}")
    p(f"s_lshr_b32 {s(sT1)}, {s(sW)}, 1")
    p(f"s_lshl_b32 {s(sT1)}, {s(sT1)}, 7")
    p(f"s_add_u32 {s(sT0)}, {s(sT0)}, {s(sT1)}")
    p(f"s_and_b32 {s(sT1)}, {s(sW)}, 1")
    p(f"s_lshl_b32 {s(sT1)}, {s(sT1)}, 6")
    p(f"s_add_u32 {s(sT0)}, {s(sT0)}, {s(sT1)}")
    p(f"v_add_u32 {v(vPub)}, {s(sT0)}, v16")
    p(f"v_mov_b32 {v(vBuf)}, {v(vL16)}")
    p(f"v_and_b32 v16, 3, v14")
    p(f"v_lshrrev_b32 v17, 2, v14")
    p(f"v_lshrrev_b32 v19, 1, v17")
    p(f"v_lshl_add_u32 v19, v16, 1, v19")
    p(f"v_and_b32 v17, 1, v17")
    p(f"v_lshlrev_b32 v17, 4, v17")
    p(f"v_mov_b32 v20, 0x3f80")
    p(f"v_lshlrev_b32 v20, v17, v20")
    for i in range(4):
        p(f"v_cmp_eq_u32 vcc, {i}, v19")
        p(f"v_cndmask_b32 {v(24+i)}, 0, v20, vcc")
    p(f"v_add_u32 v21, {L_SEL}, {v(vL16)}")
    p(f"ds_write_b128 v21, v[24:27]")
    for k_, val in enumerate((0x3f803f80, 0x3f003f00, 0)):
        for i in range(4): p(f"v_mov_b32 {v(28+i)}, {hex(val)}")
        p(f"ds_write_b128 v21, v[28:31] offset:{1024*(k_+1)}")
    p(f"s_lshr_b32 {s(sT1)}, {s(sH)}, 2")
    for q2 in range(2):
        p(f"s_add_u32 {s(sT0)}, {s(sH)}, {q2}")
        p(f"s_and_b32 {s(sT0)}, {s(sT0)}, 1")
        p(f"s_lshl_b32 {s(sT0)}, {s(sT0)}, 15")
        p(f"s_add_u32 {s(sPst+q2)}, {s(sT0)}, {WS_P}")
        p(f"s_add_u32 {s(sT0)}, {s(sT1)}, {q2}")
        p(f"s_and_b32 {s(sT0)}, {s(sT0)}, 1")
        p(f"s_lshl_b32 {s(sT0)}, {s(sT0)}, 10")
        p(f"s_add_u32 {s(sPld+q2)}, {s(sT0)}, {WS_P}")
    p(f"s_mov_b32 {s(sC)}, 0x3e0293ee")
    p(f"s_mov_b32 {s(sC+1)}, 0x3e0293ee")
    p(f"s_mov_b32 {s(sPubMask)}, 0x000f000f")
    p(f"s_mov_b32 {s(sPubMask+1)}, 0x000f000f")
    for b in range(1, 4):
        p(f"s_add_u32 {s(sT0)}, {s(sW)}, {b}")
        p(f"s_and_b32 {s(sT0)}, {s(sT0)}, 3")
        p(f"s_lshl_b32 {s(sT0)}, {s(sT0)}, 10")
        p(f"s_add_u32 {s(sO+b-1)}, {s(sT0)}, {L_OI}")
    p(f"s_lshl_b32 {s(sT0)}, {s(sW)}, 10")
    p(f"s_add_u32 {s(sO+3)}, {s(sT0)}, {L_OI}")
    p(f"s_lshl_b32 {s(sT0)}, {s(sH)}, 13")
    p(f"s_lshl_b32 {s(sW2k)}, {s(sW)}, 11")
    p(f"s_add_u32 {s(sT0)}, {s(sT0)}, {s(sW2k)}")
    p(f"s_add_u32 {s(sKX)}, {s(sT0)}, {WS_KX}")
    p(f"s_add_u32 {s(sVX)}, {s(sT0)}, {WS_VX}")
    p(f"s_add_u32 {s(sM0K)}, {s(sW2k)}, {L_BUF}")
    p(f"s_add_u32 {s(sM0V)}, {s(sW2k)}, {L_BUF + 8192}")
    p(f"s_lshl_b32 {s(sT0)}, {s(sH)}, 11")
    p(f"s_lshl_b32 {s(sT1)}, {s(sW)}, 9")
    p(f"s_add_u32 {s(sKM)}, {s(sT0)}, {s(sT1)}")
    p(f"s_lshl_b32 {s(sVM)}, {s(sKM)}, 1")
    p(f"s_add_u32 {s(sVM)}, {s(sVM)}, {WS_VM}")
    p(f"s_add_u32 {s(sKM)}, {s(sKM)}, {WS_KM}")
    p(f"s_mov_b32 {s(sMpub)}, {WS_M + 8192}")
    p(f"s_mov_b32 {s(sMrst)}, {WS_M + 2*8192}")
    p(f"s_mov_b32 {s(sStep)}, 0")
    p("s_mov_b32 s58, 0"); p("s_mov_b32 s59, 0")

    dma_list = [
        [f"s_mov_b32 m0, {s(sM0K)}", f"buffer_load_dwordx4 {v(vL16)}, {SRD}, {s(sKX)} offen{DS} lds"],
        [f"buffer_load_dwordx4 {v(vL16)}, {SRD}, {s(sKX)} offen offset:1024{DS} lds", f"s_add_u32 {s(sKX)}, {s(sKX)}, {32*8192}", f"s_xor_b32 {s(sM0K)}, {s(sM0K)}, 16384"],
        [f"s_mov_b32 m0, {s(sM0V)}", f"buffer_load_dwordx4 {v(vL16)}, {SRD}, {s(sVX)} offen{DS} lds"],
        [f"buffer_load_dwordx4 {v(vL16)}, {SRD}, {s(sVX)} offen offset:1024{DS} lds", f"s_add_u32 {s(sVX)}, {s(sVX)}, {32*8192}", f"s_xor_b32 {s(sM0V)}, {s(sM0V)}, 16384"],
    ]
    if not mega:
        for grp in dma_list:
            for x in grp: p(x)
    else:
        for i in range(4): p(f"v_mov_b32 {v(28+i)}, -1")
        for sl in range(2):
            p(f"s_mov_b32 {s(sT0)}, {WS_P + sl*262144}")
            for k_ in range(2): p(f"buffer_store_dwordx4 v[28:31], {v(vH1l)}, {SRD}, {s(sT0)} offen offset:{k_*1024} sc1")
        p(f"s_mov_b64 exec, {s(sPubMask,2)}")
        for sl in range(3):
            p(f"s_mov_b32 {s(sT0)}, {WS_M + sl*8192}")
            p(f"buffer_store_dword v28, {v(vPub)}, {SRD}, {s(sT0)} offen sc1")
        p(f"s_mov_b64 exec, -1")
        p("s_waitcnt vmcnt(0)")
        p("s_barrier")
        p(f"s_cmp_lg_u32 {s(sW)}, 0"); p(f"s_cbranch_scc1 L_{name}_ri")
        p(f"v_mov_b32 v28, {D_RINIT*4}"); p("v_mov_b32 v29, 1"); p("s_mov_b64 exec, 1")
        p("global_atomic_add v28, v29, s[56:57]")
        p("s_mov_b64 exec, -1")
        p.label(f"L_{name}_ri")
        p.flush_state()

    def set_srd(base, nbytes):
        p(f"s_mov_b32 {s(sSRDW)}, {s(base)}")
        p(f"s_mov_b32 {s(sSRDW+1)}, {s(base+1)}")
        p(f"s_mov_b32 {s(sSRDW+2)}, {nbytes}")
        p(f"s_mov_b32 {s(sSRDW+3)}, 0x00020000")
    SW = s(sSRDW, 4)
    set_srd(68, 8 * 512 * 2)
    for it in range(2):
        p(f"v_add_u32 v20, {256*it}, v18")
        p(f"v_and_b32 v21, 7, v20")
        p(f"v_lshrrev_b32 v22, 4, v20")
        p(f"v_bfe_u32 v23, v20, 3, 1")
        p(f"v_lshrrev_b32 v24, 3, v22")
        p(f"v_lshlrev_b32 v24, 7, v24")
        p(f"v_bfe_u32 v25, v22, 2, 1")
        p(f"v_lshl_add_u32 v24, v25, 6, v24")
        p(f"v_and_b32 v25, 3, v22")
        p(f"v_lshl_add_u32 v24, v25, 3, v24")
        p(f"v_add_u32 v24, v24, v23")
        p(f"v_lshlrev_b32 v24, 1, v24")
        p(f"v_lshl_add_u32 v24, v21, 10, v24")
        for m in range(4):
            p(f"buffer_load_ushort {v(28+m)}, v24, {SW}, 0 offen offset:{4*m}")
            p(f"buffer_load_ushort {v(32+m)}, v24, {SW}, 0 offen offset:{64+4*m}")
        for m in range(4):
            p(f"v_lshl_or_b32 {v(28+m)}, {v(32+m)}, 16, {v(28+m)}")
        p(f"v_lshlrev_b32 v20, 4, v20")
        p(f"ds_write_b128 v20, v[28:31] offset:{L_MEM}")

    p(f"v_and_b32 v16, 1, v15")
    p(f"v_lshlrev_b32 v16, 2, v16")
    p(f"v_lshrrev_b32 v17, 1, v15")
    p(f"v_add_u32 v16, v16, v17")
    p(f"v_lshlrev_b32 v16, 13, v16")
    p(f"v_lshl_add_u32 v16, v14, 2, v16")
    p(f"s_lshl_b32 {s(sT0)}, {s(sH)}, 8")
    p(f"s_lshl_b32 {s(sT1)}, {s(sW)}, 6")
    p(f"s_add_u32 {s(sT0)}, {s(sT0)}, {s(sT1)}")
    p(f"v_add_u32 v16, {s(sT0)}, v16")
    p(f"v_lshlrev_b32 v17, 12, v15")
    p(f"v_lshl_add_u32 v17, v14, 2, v17")
    p(f"s_lshl_b32 {s(sT0)}, {s(sH)}, 17")
    p(f"s_lshl_b32 {s(sT1)}, {s(sW)}, 8")
    p(f"s_add_u32 {s(sT0)}, {s(sT0)}, {s(sT1)}")
    p(f"v_add_u32 v17, {s(sT0)}, v17")
    p(f"v_add_u32 v19, {s(sWL)}, {v(vL16)}")
    WN = 512 * 32 * 128 * 2
    set_srd(66, WN)
    for b in range(4):
        p(f"s_add_u32 {s(sT1)}, {s(sW)}, {b}")
        p(f"s_and_b32 {s(sT1)}, {s(sT1)}, 3")
        p(f"s_lshl_b32 {s(sT1)}, {s(sT1)}, 15")
        for q in range(4):
            p(f"s_add_u32 {s(sT2)}, {s(sH)}, {q//2}")
            p(f"s_and_b32 {s(sT2)}, {s(sT2)}, 1")
            p(f"s_lshl_b32 {s(sT2)}, {s(sT2)}, 7")
            p(f"s_add_u32 {s(sT2)}, {s(sT2)}, {s(sT1)}")
            for dh in range(2):
                p(f"s_add_u32 {s(sT0)}, {s(sT2)}, {dh * 16 * 1024 + (q % 2) * 64}")
                for dl in range(4):
                    d = dh * 4 + dl
                    p(f"buffer_load_dword {a(AWO + (b*4 + q)*8 + d)}, v17, {SW}, {s(sT0)} offen offset:{dl*1024}")
    p(f"s_mov_b32 s20, 0x05040100")
    p(f"s_mov_b32 s21, 0x07060302")
    for i, base in enumerate((60, 62, 64)):
        p(f"s_mov_b32 {s(84+4*i)}, {s(base)}")
        p(f"s_mov_b32 {s(85+4*i)}, {s(base+1)}")
        p(f"s_mov_b32 {s(86+4*i)}, {WN}")
        p(f"s_mov_b32 {s(87+4*i)}, 0x00020000")
    def ld_dup(dst, t, m):
        for d in range(8):
            row = mem_col_scalar(2 * t + d // 4, d)
            p(f"s_mov_b32 {s(sT0)}, {row * 8192}")
            p(f"buffer_load_dword {v(dst + d)}, v16, {s(84+4*m,4)}, {s(sT0)} offen")
    for t in range(6):
        for m in range(2): ld_dup(96 + 16 * t + 8 * m, t, m)
    NSLOT = 4
    def slot(i): return 24 + 16 * (i % NSLOT)
    def issue(u):
        for d in range(8):
            for hl in range(2):
                j = 2 * (2 * u + hl) + d // 4
                row = mem_col_scalar(j, d)
                p(f"s_mov_b32 {s(sT0)}, {row * 8192}")
                p(f"buffer_load_dword {v(slot(u) + 2*d + hl)}, v16, {s(84+8,4)}, {s(sT0)} offen")
    def process(u):
        sl = slot(u)
        for par in range(2):
            sel = "s20" if par == 0 else "s21"
            for d in range(8):
                p(f"v_perm_b32 {v(88 + d % 4)}, {v(sl+2*d+1)}, {v(sl+2*d)}, {sel}")
                p(f"v_accvgpr_write_b32 {a(AWV + (u*2+par)*8 + d)}, {v(88 + d % 4)}")
    for u in range(NSLOT): issue(u)
    for t in range(6):
        for m in range(2):
            for hf in range(2):
                p(f"ds_write_b128 v19, {v(96 + 16*t + 8*m + 4*hf, 4)} offset:{wl_off(t, m) + hf*1024}")
    p("s_waitcnt lgkmcnt(0)")
    for t in range(6, 16):
        for m in range(2): ld_dup(wres(t, m), t, m)
    for u in range(8):
        process(u)
        if u + NSLOT < 8: issue(u + NSLOT)
    p("s_waitcnt vmcnt(0) lgkmcnt(0)")
    if not stamps: p.raw("    s_memrealtime s[98:99]")
    p(f"s_mov_b32 {s(sFirst)}, 1")
    def kv_poll(pp, lab):
        pp(f"s_mov_b32 {s(sSpin)}, {SPIN_MAX}")
        pp.label(lab)
        pp(f"v_lshlrev_b32 v9, 3, {v(vL16)}")
        pp(f"v_min_u32 v9, {15*128}, v9")
        pp(f"s_mov_b32 {s(sT2)}, {WS_FLAG + F_KV*128}")
        pp(f"buffer_load_dword v10, v9, {SRD}, {s(sT2)} offen sc1")
        pp("s_waitcnt vmcnt(0)")
        pp("v_cmp_gt_u32 vcc, 32, v10")
        pp("s_nop 4")
        pp(f"s_ff1_i32_b64 {s(sKVok)}, vcc")
        pp(f"s_min_u32 {s(sKVok)}, {s(sKVok)}, 16")
        pp(f"s_cmp_gt_u32 {s(sKVok)}, {s(sT1)}")
        pp(f"s_cbranch_scc1 {lab}_ok")
        pp("s_sleep 2")
        pp(f"s_sub_u32 {s(sSpin)}, {s(sSpin)}, 1")
        pp(f"s_cbranch_scc0 {lab}")
        pp(f"s_branch L_{name}_abort")
        pp.label(lab + "_ok")
    if mega:
        p(f"s_mov_b32 {s(sSpin)}, {SPIN_MAX}")
        p.label(f"L_{name}_riw")
        p(f"v_mov_b32 v20, {D_RINIT*4}")
        p("global_load_dword v21, v20, s[56:57] sc1")
        p("s_waitcnt vmcnt(0)")
        p("v_readfirstlane_b32 s44, v21")
        p("s_cmp_ge_u32 s44, 32"); p(f"s_cbranch_scc1 L_{name}_riok")
        p(f"s_sub_u32 {s(sSpin)}, {s(sSpin)}, 1"); p(f"s_cbranch_scc0 L_{name}_riw"); p(f"s_branch L_{name}_abort")
        p.label(f"L_{name}_riok")
        p(f"s_mov_b32 {s(sSpin)}, {SPIN_MAX}")
        p.label(f"L_{name}_mw")
        p(f"v_mov_b32 v20, {D_MOD*4}")
        p("global_load_dword v21, v20, s[56:57] sc1")
        p("s_waitcnt vmcnt(0)")
        p("v_readfirstlane_b32 s44, v21")
        p("s_cmp_ge_u32 s44, 48"); p(f"s_cbranch_scc1 L_{name}_mok")
        p(f"s_sub_u32 {s(sSpin)}, {s(sSpin)}, 1"); p(f"s_cbranch_scc0 L_{name}_mw"); p(f"s_branch L_{name}_abort")
        p.label(f"L_{name}_mok")
        p(f"s_mov_b32 {s(sT1)}, 0")
        kv_poll(p, f"L_{name}_kv0")
        for grp in dma_list:
            for x in grp: p(x)
        p("s_waitcnt vmcnt(0)")
        p.flush_state()
    p(f"s_mov_b32 {s(sSpin)}, {SPIN_MAX}")
    p.label(f"L_{name}_mode")
    p("v_mov_b32 v20, 64")
    p("global_load_dword v22, v20, s[56:57] sc1")
    p("s_waitcnt vmcnt(0)")
    p("v_mov_b32 v20, 0")
    p("global_load_dword v21, v20, s[56:57] sc1")
    p("s_waitcnt vmcnt(0)")
    p("v_readfirstlane_b32 s44, v21")
    p("v_readfirstlane_b32 s45, v22")
    p(f"s_cmp_ge_u32 s44, {NHEAD_THR}")
    p(f"s_cbranch_scc1 L_{name}f_pre")
    p("s_cmp_ge_u32 s45, 256")
    p(f"s_cbranch_scc1 L_{name}s_pre")
    p(f"s_sub_u32 {s(sSpin)}, {s(sSpin)}, 1")
    p(f"s_cbranch_scc0 L_{name}_mode")
    p(f"s_branch L_{name}_abort")
    p.flush_state()

    def emit_loop(N, st_mod):
        g = Region(p, list(range(9, 96)))
        def st(k):
            if stamps: g.raw(f"    s_memtime s[{70+2*k}:{71+2*k}]") if k < 7 else g.raw(f"    s_memtime s[{70+2*k}:{71+2*k}]")
        def nops(n):
            for _ in range(n): g("s_nop 15")
        SMF = "v_smfmac_f32_16x16x64_bf16"
        MF32 = "v_mfma_f32_16x16x32_bf16"
        MF16 = "v_mfma_f32_16x16x16_bf16"

        g.label(f"L_{N}_top")
        XA, XB = g.vr("XA", 8), g.vr("XB", 8)
        SEL = g.vr("SEL", 4)
        RD = g.vr("RD", 4)
        t0, t1 = g.vr("t0"), g.vr("t1")
        def dly(n):
            while n > 0:
                k = min(n, 4); g(f"s_nop {4*k-1}"); n -= k
        def ld_p(X):
            g(f"buffer_load_dwordx4 {X[0:4]}, {v(vH1l)}, {SRD}, {s(sPld)} offen sc1")
            g(f"buffer_load_dwordx4 {X[4:8]}, {v(vH1l)}, {SRD}, {s(sPld+1)} offen sc1")
        def chk8(Y):
            g(f"v_max3_u32 {t0}, {Y[0]}, {Y[1]}, {Y[2]}")
            g(f"v_max3_u32 {t1}, {Y[3]}, {Y[4]}, {Y[5]}")
            g(f"v_max3_u32 {t0}, {t0}, {Y[6]}, {Y[7]}")
            g(f"v_max_u32 {t0}, {t0}, {t1}")
            g(f"v_cmp_eq_u32 vcc, -1, {t0}")
        g(f"ds_read_b128 {SEL}, {v(vL16)} offset:{L_SEL}")
        dly(opt.get("d1", 6))
        g(f"s_mov_b32 {s(sSpin)}, {SPIN_MAX}")
        if opt.get("h1depth", 2) == 1:
            g("s_waitcnt lgkmcnt(0)")
            g.flush_state()
            g.label(f"L_{N}_h1p")
            ld_p(XA)
            g("s_waitcnt vmcnt(0)")
            chk8(XA)
            g(f"s_cbranch_vccz L_{N}_h1useA")
            g("s_add_u32 s58, s58, 0x10000")
            g(f"s_sub_u32 {s(sSpin)}, {s(sSpin)}, 1")
            g(f"s_cbranch_scc0 L_{N}_h1p")
            g(f"s_branch L_{name}_abort")
        else:
            ld_p(XA)
            dly(opt.get("d1b", 8))
            ld_p(XB)
            g("s_waitcnt lgkmcnt(0)")
            g.flush_state()
            g.label(f"L_{N}_h1p")
            g("s_waitcnt vmcnt(2)")
            chk8(XA)
            g(f"s_cbranch_vccz L_{N}_h1useA")
            ld_p(XA)
            g("s_waitcnt vmcnt(2)")
            chk8(XB)
            g(f"s_cbranch_vccz L_{N}_h1useB")
            ld_p(XB)
            g("s_add_u32 s58, s58, 0x10000")
            g(f"s_sub_u32 {s(sSpin)}, {s(sSpin)}, 1")
            g(f"s_cbranch_scc0 L_{N}_h1p")
            g(f"s_branch L_{name}_abort")
        g.label(f"L_{N}_h1useB")
        g.flush_state()
        g(f"{MF32} {RD}, {SEL}, {XB[0:4]}, 0")
        g(f"{MF32} {RD}, {SEL}, {XB[4:8]}, {RD}")
        g(f"s_branch L_{N}_red")
        g.label(f"L_{N}_h1useA")
        g.flush_state()
        g(f"{MF32} {RD}, {SEL}, {XA[0:4]}, 0")
        g(f"{MF32} {RD}, {SEL}, {XA[4:8]}, {RD}")
        g.label(f"L_{N}_red")
        g.flush_state()
        st(12)
        g("s_nop 7")
        for ror in (4, 8):
            g(f"v_add_f32_dpp {RD[0]}, {RD[0]}, {RD[0]} row_ror:{ror} row_mask:0xf bank_mask:0xf")
            g(f"v_add_f32_dpp {RD[1]}, {RD[1]}, {RD[1]} row_ror:{ror} row_mask:0xf bank_mask:0xf")
        g(f"v_cvt_pk_bf16_f32 {RD[0]}, {RD[0]}, {RD[1]}")
        g(f"s_mov_b64 exec, {s(sPubMask,2)}")
        g(f"buffer_store_dword {RD[0]}, {v(vPub)}, {SRD}, {s(sMpub)} offen{st_mod}")
        g(f"s_mov_b64 exec, -1")
        st(13)
        g(f"s_add_u32 {s(sMpoll)}, {s(sMpub)}, {s(sW2k)}")
        g(f"s_mov_b32 {s(sMpub)}, {s(sMrst)}")
        g(f"s_add_u32 {s(sMrst)}, {s(sMrst)}, 8192")
        g(f"s_cmp_eq_u32 {s(sMrst)}, {WS_M + 3*8192}")
        g(f"s_cselect_b32 {s(sMrst)}, {WS_M}, {s(sMrst)}")
        for q in range(2):
            g(f"s_xor_b32 {s(sPst+q)}, {s(sPst+q)}, 262144")
        g(f"s_add_u32 {s(sStep)}, {s(sStep)}, 1")
        g(f"s_add_u32 {s(sKM)}, {s(sKM)}, {32*2048}")
        g(f"s_add_u32 {s(sVM)}, {s(sVM)}, {32*4096}")
        g(f"v_xor_b32 {v(vBuf)}, 16384, {v(vBuf)}")
        YA, YB = g.vr("YA", 8), g.vr("YB", 8)
        def ld_m(Y):
            g(f"buffer_load_dwordx4 {Y[0:4]}, {v(vL16)}, {SRD}, {s(sMpoll)} offen sc1")
            g(f"buffer_load_dwordx4 {Y[4:8]}, {v(vL16)}, {SRD}, {s(sMpoll)} offen offset:1024 sc1")
        g.label(f"L_{N}_pre")
        g.flush_state()
        wl = g.vr("wl")
        g(f"v_add_u32 {wl}, {s(sWL)}, {v(vL16)}")
        WP = {}
        pre = [(0,0),(0,1),(1,0),(1,1),(2,0),(2,1),(3,0)]
        def prel(lst):
            for f_ in lst:
                WP[f_] = g.vr(f"W{f_[0]}{f_[1]}", 8)
                for hf in range(2):
                    g(f"ds_read_b128 {WP[f_][4*hf:4*hf+4]}, {wl} offset:{wl_off(*f_) + hf*1024}")
        n1 = opt.get("pre1", 3)
        g("s_waitcnt vmcnt(1)")
        g.keep(XA, XB)
        g.flush_state()
        prel(pre[:n1])
        if opt.get("h2depth", 2) == 2:
            g(f"s_cmp_eq_u32 {s(sFirst)}, 1")
            g(f"s_cbranch_scc1 L_{N}_pre2")
            dly(opt.get("d2", 0))
            g(f"s_mov_b32 {s(sSpin)}, {SPIN_MAX}")
            ld_m(YA)
        g.label(f"L_{N}_pre2")
        prel(pre[n1:])
        accQ, accK = g.vr("accQ", 4), g.vr("accK", 4)
        g(f"ds_read_b128 {accQ}, {v(vL16)} offset:{L_ZERO}")
        g(f"ds_read_b128 {accK}, {v(vL16)} offset:{L_ZERO}")
        a2 = g.vr("a2")
        g(f"v_and_b32 {a2}, 1, {v(vIdx)}")
        g(f"v_lshl_add_u32 {a2}, {a2}, 9, {v(vA)}")
        g(f"s_cmp_eq_u32 {s(sFirst)}, 1")
        g(f"s_mov_b32 {s(sFirst)}, 0")
        g(f"s_cbranch_scc1 L_{N}_e0")
        if opt.get("h2depth", 2) == 2:
            dly(opt.get("d2b", 0))
            ld_m(YB)
            g.flush_state()
            g.label(f"L_{N}_h2p")
            g("s_waitcnt vmcnt(2)")
            chk8(YA)
            g(f"s_cbranch_vccz L_{N}_h2useA")
            ld_m(YA)
            g("s_waitcnt vmcnt(2)")
            chk8(YB)
            g(f"s_cbranch_vccz L_{N}_h2useB")
            ld_m(YB)
            g("s_add_u32 s59, s59, 1")
            g(f"s_sub_u32 {s(sSpin)}, {s(sSpin)}, 1")
            g(f"s_cbranch_scc0 L_{N}_h2p")
            g(f"s_branch L_{name}_abort")
        else:
            dly(opt.get("d2b", 0))
            g(f"s_mov_b32 {s(sSpin)}, {SPIN_MAX}")
            g.flush_state()
            g.label(f"L_{N}_h2p")
            ld_m(YA)
            g("s_waitcnt vmcnt(0)")
            chk8(YA)
            g(f"s_cbranch_vccz L_{N}_h2useA")
            g("s_add_u32 s59, s59, 1")
            g(f"s_sub_u32 {s(sSpin)}, {s(sSpin)}, 1")
            g(f"s_cbranch_scc0 L_{N}_h2p")
            g(f"s_branch L_{name}_abort")
        ma = g.vr("ma")
        g.label(f"L_{N}_h2useB")
        g.flush_state()
        g(f"v_add_u32 {ma}, {s(sW2k)}, {v(vL16)}")
        g(f"ds_write_b128 {ma}, {YB[0:4]} offset:{L_MEM}")
        g(f"ds_write_b128 {ma}, {YB[4:8]} offset:{L_MEM+1024}")
        g(f"s_branch L_{N}_h2done")
        g.label(f"L_{N}_h2useA")
        g.flush_state()
        g(f"v_add_u32 {ma}, {s(sW2k)}, {v(vL16)}")
        g(f"ds_write_b128 {ma}, {YA[0:4]} offset:{L_MEM}")
        g(f"ds_write_b128 {ma}, {YA[4:8]} offset:{L_MEM+1024}")
        g.label(f"L_{N}_h2done")
        st(14)
        NEG = g.vr("NEG", 4)
        for i in range(4): g(f"v_mov_b32 {NEG[i]}, -1")
        g("s_waitcnt vmcnt(0)")
        g.keep(YA, YB)
        for q in range(2): g(f"buffer_store_dwordx4 {NEG}, {v(vH1l)}, {SRD}, {s(sPld+q)} offen{st_mod}")
        g(f"s_mov_b64 exec, {s(sPubMask,2)}")
        g(f"buffer_store_dword {NEG[0]}, {v(vPub)}, {SRD}, {s(sMrst)} offen{st_mod}")
        g(f"s_mov_b64 exec, -1")
        for q in range(2):
            g(f"s_xor_b32 {s(sPld+q)}, {s(sPld+q)}, 262144")
        g.label(f"L_{N}_e0")
        if mega:
            g(f"s_add_u32 {s(sT1)}, {s(sStep)}, 1"); g(f"s_lshr_b32 {s(sT1)}, {s(sT1)}, 2"); g(f"s_min_u32 {s(sT1)}, {s(sT1)}, 15")
            g(f"s_cmp_gt_u32 {s(sKVok)}, {s(sT1)}")
            g(f"s_cbranch_scc1 L_{N}_kvok")
            g.raw("KVPOLL " + N)
            g.label(f"L_{N}_kvok")
        g("s_waitcnt lgkmcnt(0)")
        st(15)
        g.raw("DUMP")
        g("s_barrier")
        g.flush_state()
        st(0)
        if stamps: g.raw("    s_memrealtime s[72:73]")
        AF = {}
        def aread(t):
            r = g.vr(f"A{t}", 4)
            g(f"ds_read_b128 {r}, {v(vA)} offset:{L_MEM + t*512}")
            return r
        AV = {}
        def avread(u):
            AV[u] = g.vr(f"AV{u}", 4)
            g(f"ds_read_b128 {AV[u]}, {a2} offset:{L_MEM + u*1024}")
        seq = pre + [(6,0),(6,1),(7,0),(7,1),(3,1)] + [(t, m) for t in range(8, 16) for m in range(2)] + [(4,0),(4,1),(5,0),(5,1)]
        aorder = [0, 1, 2, 3, 6, 7] + list(range(8, 16)) + [4, 5]
        streams = [(3,1),(4,0),(4,1),(5,0),(5,1)]
        LA = 4
        for t in aorder[:LA]: AF[t] = aread(t)
        nextA = [LA]
        WSr = {}
        extra = {}
        def after(pos, fn): extra.setdefault(pos, []).append(fn)
        def nexta():
            if nextA[0] < len(aorder):
                t = aorder[nextA[0]]; AF[t] = aread(t); nextA[0] += 1
        for ps in [1, 3, 5, 8, 10, 13, 15, 17, 19, 21, 23, 25]: after(ps, nexta)
        def stream(f_):
            WSr[f_] = g.vr(f"S{f_[0]}{f_[1]}", 8)
            for hf in range(2):
                g(f"ds_read_b128 {WSr[f_][4*hf:4*hf+4]}, {wl} offset:{wl_off(*f_) + hf*1024}")
        spos = opt.get("spos", [4, 14, 18, 20, 22])
        if opt.get("nostream"):
            for f_ in streams: WSr[f_] = v(RES, 8)
        else:
            for f_, ps in zip(streams, spos): after(ps, lambda f_=f_: stream(f_))
        if not opt.get("nodma"):
            for k_, grp in enumerate(dma_list): after(opt.get("dmapos", [7, 9, 11, 16])[k_], lambda grp=grp: [g(x) for x in grp])
        if mega:
            def progress():
                pg = g.vr("pg", 2, 1)
                g(f"s_or_b32 {s(sT2)}, {s(sH)}, {s(sW)}")
                g(f"s_cmp_lg_u32 {s(sT2)}, 0")
                g(f"s_cbranch_scc1 L_{N}_nopg")
                g(f"s_mov_b64 exec, 1")
                g(f"s_mov_b32 {s(sT2)}, {WS_FLAG + F_REC*128}")
                g(f"v_mov_b32 {pg[0]}, 0"); g(f"v_mov_b32 {pg[1]}, {s(sStep)}")
                g(f"buffer_store_dword {pg[1]}, {pg[0]}, {SRD}, {s(sT2)} offen sc1")
                g(f"s_mov_b64 exec, -1")
                g.label(f"L_{N}_nopg")
                g("s_nop 0")
            after(12, progress)
        accV = [g.vr("accV0", 4), g.vr("accV1", 4)]
        after(26, lambda: g(f"ds_read_b128 {accV[0]}, {v(vL16)} offset:{L_ZERO}"))
        after(27, lambda: g(f"ds_read_b128 {accV[1]}, {v(vL16)} offset:{L_ZERO}"))
        vorder = list(range(8))
        after(27, lambda: avread(0)); after(28, lambda: avread(1)); after(29, lambda: avread(2)); after(30, lambda: avread(3))
        for i, f_ in enumerate(seq):
            t, m = f_
            w_ = str(WP[f_]) if f_ in WP else (str(WSr[f_]) if f_ in WSr else v(wres(t, m), 8))
            g(f"{SMF} {accQ if m == 0 else accK}, {AF[t]}, {w_}, {v(vIdx)}")
            for fn in extra.get(i, []): fn()
        st(2)
        def cut(name):
            if opt.get("cut") == name:
                g("s_waitcnt vmcnt(0) lgkmcnt(0)")
                g(f"s_add_u32 {s(sStep)}, {s(sStep)}, 1")
                g(f"s_cmp_eq_u32 {s(sStep)}, {nsteps-1}")
                g(f"s_cbranch_scc1 L_{name}_done")
                g(f"s_mov_b32 {s(sFirst)}, 1")
                g(f"s_branch L_{N}_pre")
        KX = {}
        def kxread(T, t):
            KX[(T, t)] = g.vr(f"KX{T}{t}", 4)
            g(f"ds_read_b128 {KX[(T,t)]}, {v(vBuf)} offset:{(T*4 + t)*1024}")
        vseq = [(u, par) for u in vorder for par in range(2)]
        vpos = [0]
        def vmf(n=1):
            for _ in range(n):
                u, par = vseq[vpos[0]]; vpos[0] += 1
                g(f"{SMF} {accV[par]}, {AV[u]}, {a(AWV + (u*2+par)*8, 8)}, {v(vIdx)}")
        qp, kp = g.vr("qp", 2), g.vr("kp", 2)
        vmf(1)
        avread(4)
        vmf(1)
        g(f"v_pk_mul_f32 {accQ[0:2]}, {accQ[0:2]}, {s(sC,2)}"); g(f"v_pk_mul_f32 {accQ[2:4]}, {accQ[2:4]}, {s(sC,2)}")
        avread(5)
        vmf(1)
        g(f"v_cvt_pk_bf16_f32 {qp[0]}, {accQ[0]}, {accQ[1]}"); g(f"v_cvt_pk_bf16_f32 {qp[1]}, {accQ[2]}, {accQ[3]}")
        g(f"ds_write_b64 {v(vQw)}, {qp}")
        g(f"v_cvt_pk_bf16_f32 {kp[0]}, {accK[0]}, {accK[1]}"); g(f"v_cvt_pk_bf16_f32 {kp[1]}, {accK[2]}, {accK[3]}")
        g(f"ds_write_b64 {v(vQw)}, {kp} offset:{L_KI - L_QI}")
        vmf(1)
        avread(6); avread(7)
        vmf(1)
        kxread(0, 0); kxread(1, 0)
        vmf(1)
        g("s_waitcnt lgkmcnt(4)")
        st(3)
        g("s_barrier")
        st(4)
        QT = [g.vr(f"QT{t}", 4) for t in range(4)]
        KM = [g.vr(f"KM{t}", 4) for t in range(4)]
        def qtread(t):
            for u in range(2): g(f"ds_read_b64_tr_b16 {QT[t][2*u:2*u+2]}, {v(vQr)} offset:{(32*t + 16*u)*8}")
        def kmread(t):
            for u in range(2): g(f"ds_read_b64_tr_b16 {KM[t][2*u:2*u+2]}, {v(vQr)} offset:{L_KI - L_QI + (32*t + 16*u)*8}")
        qtread(0); qtread(1)
        vmf(1)
        kxread(0, 1); kxread(1, 1)
        vmf(1)
        qtread(2); qtread(3)
        vmf(1)
        kxread(0, 2); kxread(1, 2)
        vmf(1)
        kxread(0, 3); kxread(1, 3)
        vmf(1)
        h8 = g.vr("h8")
        g(f"v_lshrrev_b32 {h8}, 1, {v(vL16)}")
        g(f"buffer_store_dwordx2 {kp}, {h8}, {SRD}, {s(sKM)} offen sc1")
        vmf(1)
        kmread(0); kmread(1)
        vmf(1)
        kmread(2); kmread(3)
        vmf(1)
        vxa = g.vr("vxa")
        g(f"v_add_u32 {vxa}, {s(sW2k)}, {v(vBuf)}")
        vmf(2)
        assert vpos[0] == 16, vpos
        S1, S2, SM = g.vr("S1", 4), g.vr("S2", 4), g.vr("SM", 4)
        def mm(D, A_, B_, first): g(f"{MF32} {D}, {A_}, {B_}, {'0' if first else D}")
        VXF = [g.vr("VX0", 4), g.vr("VX1", 4)]
        ONE, HALF = g.vr("ONE", 4), g.vr("HALF", 4)
        WACC = [g.vr(f"WA{q}", 4) for q in range(4)]
        VE = g.vr("VE", 4)
        for t in range(4):
            mm(S1, KX[(0, t)], QT[t], t == 0)
            mm(S2, KX[(1, t)], QT[t], t == 0)
            if t == 1:
                g(f"ds_read_b128 {VXF[0]}, {vxa} offset:8192")
                g(f"ds_read_b128 {VXF[1]}, {vxa} offset:{8192+1024}")
            if t == 2:
                g(f"v_cvt_pk_bf16_f32 {VE[0]}, {accV[0][0]}, {accV[0][1]}"); g(f"v_cvt_pk_bf16_f32 {VE[1]}, {accV[0][2]}, {accV[0][3]}")
                g(f"ds_read_b128 {ONE}, {v(vL16)} offset:{L_ONE}")
            if t == 3:
                g(f"v_cvt_pk_bf16_f32 {VE[2]}, {accV[1][0]}, {accV[1][1]}"); g(f"v_cvt_pk_bf16_f32 {VE[3]}, {accV[1][2]}, {accV[1][3]}")
                g(f"ds_read_b128 {HALF}, {v(vL16)} offset:{L_HALF}")
        m_, u_ = g.vr("m", 2), g.vr("u")
        for t in range(4):
            mm(SM, KM[t], QT[t], t == 0)
            if t == 0: g(f"buffer_store_dwordx4 {VE}, {v(vL16)}, {SRD}, {s(sVM)} offen sc1")
            if t == 1:
                g(f"s_cmp_eq_u32 {s(sStep)}, {nsteps-1}")
                g(f"s_cbranch_scc1 L_{name}_done")
            if t == 2:
                g(f"v_max3_f32 {m_[0]}, {S1[0]}, {S1[1]}, {S1[2]}")
                g(f"v_max3_f32 {u_}, {S1[3]}, {S2[0]}, {S2[1]}")
            if t == 3:
                g(f"v_max3_f32 {m_[0]}, {m_[0]}, {S2[2]}, {S2[3]}")
                g(f"v_max_f32 {m_[0]}, {m_[0]}, {u_}")
        st(5)
        for q in range(4): g(f"ds_read_b128 {WACC[q]}, {v(vL16)} offset:{L_ZERO}")
        g(f"v_max3_f32 {u_}, {SM[0]}, {SM[1]}, {SM[2]}")
        g(f"v_max3_f32 {m_[0]}, {m_[0]}, {u_}, {SM[3]}")
        g(f"v_mov_b32 {u_}, {m_[0]}")
        g(f"v_permlane32_swap_b32 {m_[0]}, {u_}")
        g(f"v_max_f32 {m_[0]}, {m_[0]}, {u_}")
        g(f"v_mov_b32 {u_}, {m_[0]}")
        g(f"v_permlane16_swap_b32 {m_[0]}, {u_}")
        g(f"v_max_f32 {m_[0]}, {m_[0]}, {u_}")
        st(6)
        P12, PM = g.vr("P12", 4), g.vr("PM", 2)
        def psub(S):
            for i in (0, 2): g(f"v_pk_add_f32 {S[i:i+2]}, {S[i:i+2]}, {m_} op_sel_hi:[1,0] neg_lo:[0,1] neg_hi:[0,1]")
        psub(S1); psub(S2)
        for i in range(4): g(f"v_exp_f32 {S1[i]}, {S1[i]}")
        psub(SM)
        for i in range(4): g(f"v_exp_f32 {S2[i]}, {S2[i]}")
        g(f"v_cvt_pk_bf16_f32 {P12[0]}, {S1[0]}, {S1[1]}")
        g(f"v_cvt_pk_bf16_f32 {P12[1]}, {S1[2]}, {S1[3]}")
        g(f"v_cvt_pk_bf16_f32 {P12[2]}, {S2[0]}, {S2[1]}")
        g(f"v_cvt_pk_bf16_f32 {P12[3]}, {S2[2]}, {S2[3]}")
        O0, O1, L = g.vr("O0", 4), g.vr("O1", 4), g.vr("L", 4)
        st(7)
        g(f"v_exp_f32 {SM[0]}, {SM[0]}")
        mm(L, ONE, P12, True)
        g(f"v_exp_f32 {SM[1]}, {SM[1]}")
        mm(O0, VXF[0], P12, True)
        g(f"v_exp_f32 {SM[2]}, {SM[2]}")
        mm(O1, VXF[1], P12, True)
        g(f"v_exp_f32 {SM[3]}, {SM[3]}")
        g(f"v_cvt_pk_bf16_f32 {PM[0]}, {SM[0]}, {SM[1]}")
        g(f"v_cvt_pk_bf16_f32 {PM[1]}, {SM[2]}, {SM[3]}")
        g(f"{MF16} {L}, {HALF[0:2]}, {PM}, {L}")
        g(f"{MF16} {O0}, {VE[0:2]}, {PM}, {O0}")
        g(f"{MF16} {O1}, {VE[2:4]}, {PM}, {O1}")
        st(8)
        rl = g.vr("rl", 2)
        oa = g.vr("oa", 4, 1)
        g(f"v_add_u32 {oa[3]}, {s(sO+3)}, {v(vL16)}")
        for b in range(1, 4): g(f"v_add_u32 {oa[b-1]}, {s(sO+b-1)}, {v(vL16)}")
        g(f"v_rcp_f32 {rl[0]}, {L[0]}")
        for i in (0, 2): g(f"v_pk_mul_f32 {O0[i:i+2]}, {O0[i:i+2]}, {rl} op_sel_hi:[1,0]")
        for i in (0, 2): g(f"v_pk_mul_f32 {O1[i:i+2]}, {O1[i:i+2]}, {rl} op_sel_hi:[1,0]")
        OA = [g.vr(f"OA{b}", 4) for b in range(4)]
        for j in range(4): g(f"v_cvt_pk_bf16_f32 {OA[0][j]}, {O0[j]}, {O1[j]}")
        g(f"ds_write_b128 {oa[3]}, {OA[0]}")
        def wo(b, q): g(f"{SMF} {WACC[q]}, {OA[b]}, {a(AWO + (b*4+q)*8, 8)}, {v(vIdx)}")
        st(9)
        wo(0, 0); wo(0, 1)
        g("s_waitcnt lgkmcnt(0)")
        g("s_barrier")
        st(10)
        for b in range(1, 4): g(f"ds_read_b128 {OA[b]}, {oa[b-1]}")
        wo(0, 2); wo(0, 3)
        PK = [g.vr("PK0", 4), g.vr("PK1", 4)]
        def cvt(q):
            g(f"v_cvt_pk_bf16_f32 {PK[q//2][2*(q%2)]}, {WACC[q][0]}, {WACC[q][1]}")
            g(f"v_cvt_pk_bf16_f32 {PK[q//2][2*(q%2)+1]}, {WACC[q][2]}, {WACC[q][3]}")
        def pst(q2): g(f"buffer_store_dwordx4 {PK[q2]}, {v(vH1s)}, {SRD}, {s(sPst+q2)} offen{st_mod}")
        for b in range(1, 4): wo(b, 0)
        for b in range(1, 4): wo(b, 1)
        wo(1, 2); cvt(0); wo(2, 2); wo(3, 2); cvt(1); pst(0)
        for b in range(1, 4): wo(b, 3)
        cvt(2); cvt(3); pst(1)
        st(11)
        if opt.get("nocomm"):
            g(f"s_add_u32 {s(sStep)}, {s(sStep)}, 1")
            g(f"s_mov_b32 {s(sFirst)}, 1")
            g(f"v_xor_b32 {v(vBuf)}, 16384, {v(vBuf)}")
            g(f"s_branch L_{N}_pre")
        g(f"s_branch L_{N}_top")
        items = []
        for it in g.items:
            if it[0] == "raw" and it[1].startswith("KVPOLL"):
                kva, kvb = g.vr("kva"), g.vr("kvb")
                lab = f"L_{N}_kvp"
                seqk = [("ins", f"s_mov_b32 {s(sSpin)}, {SPIN_MAX}"), ("label", lab),
                        ("ins", f"v_lshlrev_b32 {kva}, 3, {v(vL16)}"), ("ins", f"v_min_u32 {kva}, {15*128}, {kva}"),
                        ("ins", f"s_mov_b32 {s(sT2)}, {WS_FLAG + F_KV*128}"),
                        ("ins", f"buffer_load_dword {kvb}, {kva}, {SRD}, {s(sT2)} offen sc1"), ("ins", "s_waitcnt vmcnt(0)"),
                        ("ins", f"v_cmp_gt_u32 vcc, 32, {kvb}"), ("ins", "s_nop 4"),
                        ("ins", f"s_ff1_i32_b64 {s(sKVok)}, vcc"), ("ins", f"s_min_u32 {s(sKVok)}, {s(sKVok)}, 16"),
                        ("ins", f"s_cmp_gt_u32 {s(sKVok)}, {s(sT1)}"), ("ins", f"s_cbranch_scc1 L_{N}_kvok"), ("ins", "s_sleep 2"),
                        ("ins", f"s_sub_u32 {s(sSpin)}, {s(sSpin)}, 1"), ("ins", f"s_cbranch_scc0 {lab}"), ("ins", f"s_branch L_{name}_abort")]
                items.extend(seqk)
            elif it == ("raw", "DUMP"):
                if stamps:
                    items.append(("ins", "s_waitcnt lgkmcnt(0)"))
                    dv = g.vr("dv", 4); dz = g.vr("dz")
                    for x in [f"s_lshl_b32 {s(sT0)}, {s(sH)}, 2", f"s_add_u32 {s(sT0)}, {s(sT0)}, {s(sW)}", f"s_lshl_b32 {s(sT0)}, {s(sT0)}, 6",
                              f"s_add_u32 {s(sT0)}, {s(sT0)}, {s(sStep)}", f"s_lshl_b32 {s(sT0)}, {s(sT0)}, 6", f"s_add_u32 {s(sT0)}, {s(sT0)}, {WS_DBG + 4096}",
                              f"v_mov_b32 {dz}, 0", "s_mov_b64 exec, 1"]: items.append(("ins", x))
                    for k in range(4):
                        for i in range(4): items.append(("ins", f"v_mov_b32 {dv[i]}, s{70+2*(4*k+i)}"))
                        items.append(("ins", f"buffer_store_dwordx4 {dv}, {dz}, {SRD}, {s(sT0)} offen offset:{16*k}"))
                    items.append(("ins", "s_mov_b64 exec, -1")); items.append(("ins", "s_nop 4"))
            else: items.append(it)
        g.items = items
        g.finish(outer_labels=(f"L_{N}_top", f"L_{N}_pre"), verbose=False)

    emit_loop(name + "f", "")
    emit_loop(name + "s", " sc1")

    p.label(f"L_{name}_abort")
    p(f"v_mov_b32 v20, 0xdead")
    p(f"v_mov_b32 v21, {s(sStep)}")
    p(f"v_mov_b32 v22, 0")
    p(f"global_store_dwordx2 v22, v[20:21], s[56:57] offset:{(D_ABORT if mega else 32)*4}")
    p.label(f"L_{name}_done")
    if mega:
        p("s_waitcnt vmcnt(0)")
        p("s_barrier")
        p(f"s_cmp_lg_u32 {s(sW)}, 0"); p(f"s_cbranch_scc1 L_{name}_fin")
        p("s_mov_b64 exec, 1")
        p(f"v_mov_b32 v20, 0"); p("v_mov_b32 v21, 1"); p(f"s_mov_b32 {s(sT2)}, {WS_FLAG + F_RECF*128}")
        p(f"buffer_atomic_add v21, v20, {SRD}, {s(sT2)} offen")
        p("s_mov_b64 exec, -1")
    p(f"s_cmp_lg_u32 {s(sW)}, 0")
    p(f"s_cbranch_scc1 L_{name}_fin")
    if not stamps:
        p.raw("    s_memrealtime s[100:101]")
        p("s_waitcnt lgkmcnt(0)")
        p("s_sub_u32 s98, s98, s96")
        p("s_sub_u32 s100, s100, s96")
        p("v_mov_b32 v22, s98")
        p("v_mov_b32 v23, s100")
    p("v_mov_b32 v20, s58")
    p("v_mov_b32 v21, s59")
    p(f"s_lshl_b32 {s(sT0)}, {s(sH)}, 6")
    p(f"s_add_u32 {s(sT0)}, {s(sT0)}, {WS_DBG}")
    p(f"v_mov_b32 v19, 0")
    p(f"s_mov_b64 exec, 1")
    p(f"buffer_store_dwordx4 v[20:23], v19, {SRD}, {s(sT0)} offen")
    p.label(f"L_{name}_fin")
    p("s_waitcnt vmcnt(0)")
    p.label(f"L_{name}_end")
    p("s_endpgm")
    return p

def kd(name, vgpr=512, accum=256, sgpr=102):
    return f""".section .rodata,"a"
.p2align 6
.amdhsa_kernel {name}
  .amdhsa_next_free_vgpr {vgpr}
  .amdhsa_next_free_sgpr {sgpr}
  .amdhsa_accum_offset {accum}
  .amdhsa_group_segment_fixed_size 0
  .amdhsa_kernarg_size 136
  .amdhsa_user_sgpr_count 2
  .amdhsa_user_sgpr_kernarg_segment_ptr 1
  .amdhsa_system_sgpr_workgroup_id_x 1
.end_amdhsa_kernel
.text
"""

def build(path, stamps=False, opt=None, nsteps=64):
    p = gen_rec("rec_kernel", stamps=stamps, opt=opt, nsteps=nsteps)
    hdr = f"; @launch kernel=rec_kernel grid=(256,1,1) block=(256,1,1) lds={LDS_BYTES}\n.amdgcn_target \"amdgcn-amd-amdhsa--gfx950\"\n.text\n.globl rec_kernel\n"
    open(path, "w").write(hdr + p.text() + kd("rec_kernel"))
    return p

if __name__ == "__main__":
    import sys, json
    if len(sys.argv) > 2:
        opt = json.loads(sys.argv[2]); tag = sys.argv[1]
        build(f"gen/{tag}_64.s", opt=opt); build(f"gen/{tag}_32.s", opt=opt, nsteps=32); build(f"gen/{tag}_st.s", opt=opt, stamps=True)
        sys.exit(0)
    build("rec_stamps.s", stamps=True)
    build("rec_32.s", nsteps=32)
    p = build("rec_test.s")
    print(p.stats, LDS_BYTES)
```

```python
from asmlib import *
from layout import *

def srd(p, dst, lo, nbytes):
    p(f"s_mov_b32 {s(dst)}, {s(lo)}")
    p(f"s_and_b32 {s(dst+1)}, {s(lo+1)}, 0xffff")
    p(f"s_mov_b32 {s(dst+2)}, {nbytes}")
    p(f"s_mov_b32 {s(dst+3)}, 0x00020000")

def head(p, name):
    p.raw(f".p2align 8\n.type {name},@function\n{name}:")

def gen_mod(name):
    p = Prog(); head(p, name)
    p(f"s_cmp_ge_u32 s2, 113"); p(f"s_cbranch_scc1 L_{name}_end")
    p(f"s_load_dwordx2 s[4:5], s[0:1], {KA['ws']}")
    p(f"s_load_dwordx2 s[12:13], s[0:1], {KA['c']}")
    p(f"s_load_dwordx2 s[14:15], s[0:1], {KA['wmod']}")
    p("s_waitcnt lgkmcnt(0)")
    p(f"s_mov_b32 s6, {WS_BYTES}"); p("s_mov_b32 s7, 0x00020000")
    p(f"s_cmp_lt_u32 s2, 48"); p(f"s_cbranch_scc1 L_{name}_mod")
    p("s_sub_u32 s3, s2, 48")
    p("s_lshl_b32 s3, s3, 13")
    p(f"s_add_u32 s3, s3, {WS_P}")
    p("v_lshlrev_b32 v1, 4, v0")
    for i in range(4): p(f"v_mov_b32 v{4+i}, -1")
    p("buffer_store_dwordx4 v[4:7], v1, s[4:7], s3 offen")
    p("buffer_store_dwordx4 v[4:7], v1, s[4:7], s3 offen offset:4095") if False else None
    p("v_add_u32 v1, 4096, v1")
    p("buffer_store_dwordx4 v[4:7], v1, s[4:7], s3 offen")
    p("s_cmp_lg_u32 s2, 112"); p(f"s_cbranch_scc1 L_{name}_end")
    for k in range(4):
        p("v_add_u32 v1, 4096, v1")
        p("buffer_store_dwordx4 v[4:7], v1, s[4:7], s3 offen")
    p(f"s_branch L_{name}_end")
    p.label(f"L_{name}_mod")
    srd(p, 16, 12, 1024); srd(p, 20, 14, 512 * 3072 * 2)
    p("v_lshlrev_b32 v1, 2, v0")
    p("buffer_load_dword v2, v1, s[16:19], 0 offen")
    p("v_lshrrev_b32 v3, 5, v0")
    p("v_and_b32 v4, 31, v0")
    p("v_mul_u32_u24 v5, 393216, v3")
    p("v_lshl_add_u32 v5, v4, 2, v5")
    p("s_lshl_b32 s3, s2, 7")
    for k in range(64):
        if k % 32 == 0 and k: pass
        p(f"s_add_u32 s24, s3, {k*6144}")
        p(f"buffer_load_dword v{32+k}, v5, s[20:23], s24 offen")
    p("v_lshlrev_b32 v6, 16, v2")
    p("v_and_b32 v7, 0xffff0000, v2")
    for r in (6, 7):
        p(f"v_mul_f32 v8, 0xbfb8aa3b, v{r}")
        p("v_exp_f32 v8, v8")
        p("v_add_f32 v8, 1.0, v8")
        p("v_rcp_f32 v8, v8")
        p(f"v_mul_f32 v{r}, v{r}, v8")
    p("v_cvt_pk_bf16_f32 v8, v6, v7")
    p("v_lshlrev_b32 v6, 16, v8")
    p("v_and_b32 v7, 0xffff0000, v8")
    p("v_lshlrev_b32 v9, 3, v0")
    p("ds_write_b64 v9, v[6:7]")
    p("s_waitcnt lgkmcnt(0)")
    p("s_barrier")
    p("v_lshlrev_b32 v10, 8, v3")
    p("v_mov_b32 v12, 0"); p("v_mov_b32 v13, 0")
    for k4 in range(16):
        p(f"ds_read_b128 v[16:19], v10 offset:{k4*16}")
        for i in range(4):
            k = k4 * 4 + i
            p(f"v_lshlrev_b32 v14, 16, v{32+k}")
            p(f"v_and_b32 v15, 0xffff0000, v{32+k}")
            p(f"v_fmac_f32 v12, v{16+i}, v14")
            p(f"v_fmac_f32 v13, v{16+i}, v15")
    p("v_lshlrev_b32 v10, 8, v3")
    p("v_lshl_add_u32 v10, v4, 3, v10")
    p("ds_write_b64 v10, v[12:13] offset:2048")
    p("s_waitcnt lgkmcnt(0)")
    p("s_barrier")
    p("v_cmp_gt_u32 vcc, 64, v0")
    p(f"s_and_saveexec_b64 s[26:27], vcc")
    p(f"s_cbranch_execz L_{name}_end")
    p("v_lshlrev_b32 v10, 2, v0")
    for k in range(8): p(f"ds_read_b32 v{16+k}, v10 offset:{2048 + k*256}")
    for k in range(1, 8): p(f"v_add_f32 v16, v16, v{16+k}")
    p("v_cvt_pk_bf16_f32 v16, v16, v16")
    p("v_lshlrev_b32 v16, 16, v16")
    p("s_lshr_b32 s24, s2, 3")
    p("s_cmp_eq_u32 s24, 1"); p("s_cselect_b32 s25, 1, 0")
    p("s_cmp_eq_u32 s24, 4"); p("s_cselect_b32 s25, 1, s25")
    p("s_cmp_eq_u32 s25, 0"); p(f"s_cbranch_scc1 L_{name}_st")
    p("v_add_f32 v16, 1.0, v16")
    p("v_cvt_pk_bf16_f32 v16, v16, v16")
    p("v_lshlrev_b32 v16, 16, v16")
    p.label(f"L_{name}_st")
    p("s_lshl_b32 s3, s2, 8")
    p(f"s_add_u32 s3, s3, {WS_MOD}")
    p("buffer_store_dword v16, v10, s[4:7], s3 offen")
    p.label(f"L_{name}_end")
    p("s_endpgm")
    return p.text() + kd(name, vgpr=128, accum=128)

def gen_ln(name, which):
    p = Prog(); head(p, name)
    p(f"s_cmp_ge_u32 s2, 32"); p(f"s_cbranch_scc1 L_{name}_end")
    p(f"s_load_dwordx2 s[4:5], s[0:1], {KA['ws']}")
    p(f"s_load_dwordx2 s[12:13], s[0:1], {KA['x']}")
    p("v_lshrrev_b32 v1, 6, v0")
    p("v_readfirstlane_b32 s8, v1")
    p("v_and_b32 v2, 63, v0")
    p("s_waitcnt lgkmcnt(0)")
    p(f"s_mov_b32 s6, {WS_BYTES}"); p("s_mov_b32 s7, 0x00020000")
    srd(p, 16, 12, 2048 * 512 * 2)
    p("s_lshl_b32 s9, s2, 2"); p("s_add_u32 s9, s9, s8")
    p("v_and_b32 v3, 15, v2")
    p("v_lshrrev_b32 v4, 4, v2")
    p("v_lshlrev_b32 v5, 10, v3")
    p("v_lshl_add_u32 v5, v4, 4, v5")
    p("s_lshl_b32 s10, s9, 14")
    X = 64
    for t in range(16):
        p(f"buffer_load_dwordx4 {v(8+4*(t%8),4)}, v5, s[16:19], s10 offen offset:{t*64}")
        if t % 8 == 7:
            for tt in range(t - 7, t + 1):
                for d in range(4):
                    src = 8 + 4 * (tt % 8) + d
                    p(f"v_lshlrev_b32 {v(X+8*tt+2*d)}, 16, {v(src)}")
                    p(f"v_and_b32 {v(X+8*tt+2*d+1)}, 0xffff0000, {v(src)}")
    p("v_lshlrev_b32 v6, 5, v4")
    if which == 2:
        p("v_lshlrev_b32 v7, 11, v3")
        p("v_lshl_add_u32 v7, v4, 5, v7")
        p("s_lshl_b32 s11, s9, 15")
        p(f"s_add_u32 s11, s11, {WS_PW}")
        p(f"s_mov_b32 s20, {WS_MOD + 2*2048}")
        p("s_lshl_b32 s21, s9, 15")
        p(f"s_add_u32 s21, s21, {WS_X1}")
        for t in range(16):
            for sp in range(4):
                p(f"s_add_u32 s22, s11, {sp * 4 * MB}")
                for hf in range(2):
                    p(f"buffer_load_dwordx4 {v(8+8*sp+4*hf,4)}, v7, s[4:7], s22 offen offset:{t*128+hf*16}")
            for hf in range(2):
                p(f"buffer_load_dwordx4 {v(40+4*hf,4)}, v6, s[4:7], s20 offen offset:{t*128+hf*16}")
            for e in range(8):
                p(f"v_add_f32 {v(8+e)}, {v(8+e)}, {v(16+e)}")
                p(f"v_add_f32 {v(24+e)}, {v(24+e)}, {v(32+e)}")
                p(f"v_add_f32 {v(8+e)}, {v(8+e)}, {v(24+e)}")
                p(f"v_fmac_f32 {v(X+8*t+e)}, {v(40+e)}, {v(8+e)}")
            for hf in range(2):
                p(f"buffer_store_dwordx4 {v(X+8*t+4*hf,4)}, v7, s[4:7], s21 offen offset:{t*128+hf*16}")
    p(f"v_add_f32 v8, {v(X)}, {v(X+1)}")
    p(f"v_add_f32 v9, {v(X+2)}, {v(X+3)}")
    for e in range(4, 128, 2):
        p(f"v_add_f32 v8, v8, {v(X+e)}")
        p(f"v_add_f32 v9, v9, {v(X+e+1)}")
    p("v_add_f32 v8, v8, v9")
    def xsum(r):
        p(f"v_mov_b32 v10, {r}"); p(f"v_permlane32_swap_b32 {r}, v10"); p(f"v_add_f32 {r}, {r}, v10")
        p(f"v_mov_b32 v10, {r}"); p(f"v_permlane16_swap_b32 {r}, v10"); p(f"v_add_f32 {r}, {r}, v10")
    xsum("v8")
    p("v_mul_f32 v8, 0x3b000000, v8")
    for e in range(128): p(f"v_sub_f32 {v(X+e)}, {v(X+e)}, v8")
    p(f"v_mul_f32 v9, {v(X)}, {v(X)}")
    p(f"v_mul_f32 v11, {v(X+1)}, {v(X+1)}")
    for e in range(2, 128, 2):
        p(f"v_fmac_f32 v9, {v(X+e)}, {v(X+e)}")
        p(f"v_fmac_f32 v11, {v(X+e+1)}, {v(X+e+1)}")
    p("v_add_f32 v9, v9, v11")
    xsum("v9")
    p("v_mov_b32 v11, 0x3727c5ac")
    p("v_fmac_f32 v11, 0x3b000000, v9")
    p("v_rsq_f32 v11, v11")
    shift_row, scale_row = (0, 1) if which == 1 else (3, 4)
    p(f"s_mov_b32 s20, {WS_MOD + shift_row*2048}")
    p(f"s_mov_b32 s21, {WS_MOD + scale_row*2048}")
    p("s_lshl_b32 s22, s9, 14")
    p(f"s_add_u32 s22, s22, {WS_H if which == 1 else WS_H2}")
    p("v_lshlrev_b32 v7, 4, v2")
    for t in range(16):
        for hf in range(2):
            p(f"buffer_load_dwordx4 {v(16+4*hf,4)}, v6, s[4:7], s20 offen offset:{t*128+hf*16}")
            p(f"buffer_load_dwordx4 {v(24+4*hf,4)}, v6, s[4:7], s21 offen offset:{t*128+hf*16}")
        for e in range(8):
            p(f"v_mul_f32 {v(X+8*t+e)}, {v(X+8*t+e)}, v11")
            p(f"v_fma_f32 {v(X+8*t+e)}, {v(X+8*t+e)}, {v(24+e)}, {v(16+e)}")
        for d in range(4):
            p(f"v_cvt_pk_bf16_f32 {v(32+d)}, {v(X+8*t+2*d)}, {v(X+8*t+2*d+1)}")
        p(f"buffer_store_dwordx4 v[32:35], v7, s[4:7], s22 offen offset:{(t%4)*1024}")
        if t % 4 == 3: p("s_add_u32 s22, s22, 4096")
    p.label(f"L_{name}_end")
    p("s_endpgm")
    return p.text() + kd(name, vgpr=256, accum=256)

def gen_att(name):
    p = Prog(); head(p, name)
    p(f"s_cmp_ge_u32 s2, 512"); p(f"s_cbranch_scc1 L_{name}_end")
    p(f"s_load_dwordx2 s[4:5], s[0:1], {KA['ws']}")
    p("v_lshrrev_b32 v1, 6, v0")
    p("v_readfirstlane_b32 s8, v1")
    p("v_and_b32 v2, 63, v0")
    p("s_waitcnt lgkmcnt(0)")
    p(f"s_mov_b32 s6, {WS_BYTES}"); p("s_mov_b32 s7, 0x00020000")
    p("s_lshl_b32 s9, s2, 2"); p("s_add_u32 s9, s9, s8")
    p("v_lshlrev_b32 v3, 4, v2")
    p("v_and_b32 v4, 15, v2")
    p("v_lshrrev_b32 v5, 4, v2")
    p("s_lshl_b32 s10, s9, 13")
    p(f"s_add_u32 s11, s10, {WS_QX}"); p(f"s_add_u32 s12, s10, {WS_KX}"); p(f"s_add_u32 s13, s10, {WS_VX}")
    p("s_lshl_b32 s14, s9, 11"); p(f"s_add_u32 s14, s14, {WS_KM}")
    p("s_lshl_b32 s15, s9, 12"); p(f"s_add_u32 s15, s15, {WS_VM}")
    g = Region(p, list(range(8, 256)))
    SRD = "s[4:7]"
    MF32 = "v_mfma_f32_16x16x32_bf16"; MF16 = "v_mfma_f32_16x16x16_bf16"
    HS = 1088
    kraw = [g.vr(f"kr{w}", 2) for w in range(4)]
    h8 = g.vr("h8")
    g(f"v_lshrrev_b32 {h8}, 1, v3")
    for w in range(4): g(f"buffer_load_dwordx2 {kraw[w]}, {h8}, {SRD}, s14 offen offset:{w*512}")
    Q = {(T, t): g.vr(f"Q{T}{t}", 4) for T in range(2) for t in range(4)}
    K = {(T, t): g.vr(f"K{T}{t}", 4) for T in range(2) for t in range(4)}
    def ld8(D, sreg):
        for i, key in enumerate(sorted(D)):
            if i == 4: g(f"s_add_u32 {sreg}, {sreg}, 4096")
            g(f"buffer_load_dwordx4 {D[key]}, v3, {SRD}, {sreg} offen offset:{(i%4)*1024}")
    ld8(Q, "s11"); ld8(K, "s12")
    V = {(w, par): g.vr(f"V{w}{par}", 4) for w in range(4) for par in range(2)}
    ld8(V, "s13")
    VM = [g.vr(f"VM{w}", 4) for w in range(4)]
    for w in range(4): g(f"buffer_load_dwordx4 {VM[w]}, v3, {SRD}, s15 offen offset:{w*1024}")
    wa, ra, tt = g.vr("wa"), g.vr("ra"), g.vr("tt")
    g(f"s_mul_i32 s16, s8, {2*HS}")
    g(f"v_and_b32 {wa}, 1, v5"); g(f"v_mul_u32_u24 {wa}, {HS}, {wa}")
    g(f"v_lshrrev_b32 {tt}, 1, v5"); g(f"v_lshl_add_u32 {tt}, v4, 1, {tt}")
    g(f"v_lshl_add_u32 {wa}, {tt}, 3, {wa}"); g(f"v_add_u32 {wa}, s16, {wa}")
    for w in range(4): g(f"ds_write_b64 {wa}, {kraw[w]} offset:{w*256}")
    g(f"v_and_b32 {ra}, 1, v2"); g(f"v_mul_u32_u24 {ra}, {HS}, {ra}")
    g(f"v_lshrrev_b32 {tt}, 2, v4"); g(f"v_lshl_add_u32 {tt}, v5, 2, {tt}")
    g(f"v_lshl_add_u32 {ra}, {tt}, 3, {ra}"); g(f"v_add_u32 {ra}, s16, {ra}")
    g("s_waitcnt lgkmcnt(0)")
    KM = [g.vr(f"KM{t}", 4) for t in range(4)]
    for t in range(4):
        for u in range(2): g(f"ds_read_b64_tr_b16 {KM[t][2*u:2*u+2]}, {ra} offset:{(32*t+16*u)*8}")
    thr = g.vr("thr")
    g(f"v_lshlrev_b32 {thr}, 2, v5"); g(f"v_sub_u32 {thr}, v4, {thr}")
    ONE, HALF = g.vr("ONE", 4), g.vr("HALF", 2)
    for i in range(4): g(f"v_mov_b32 {ONE[i]}, 0x3f803f80")
    for i in range(2): g(f"v_mov_b32 {HALF[i]}, 0x3f003f00")
    g.keep(ra, wa)
    g("s_mov_b32 s20, 0x3e0293ee")
    g("s_mov_b32 s21, 0xff800000")
    g("s_lshr_b32 s17, s9, 5"); g("s_lshl_b32 s17, s17, 18")
    g("s_and_b32 s18, s9, 31"); g("s_lshl_b32 s18, s18, 12")
    g("s_add_u32 s17, s17, s18"); g(f"s_add_u32 s17, s17, {WS_O}")
    for Tq in range(2):
        SM, S0, S1 = g.vr("SM", 4), g.vr("S0", 4), g.vr("S1", 4)
        for t in range(4):
            z = lambda D: "0" if t == 0 else str(D)
            g(f"{MF32} {SM}, {KM[t]}, {Q[(Tq,t)]}, {z(SM)}")
            g(f"{MF32} {S0}, {K[(0,t)]}, {Q[(Tq,t)]}, {z(S0)}")
            if Tq == 1: g(f"{MF32} {S1}, {K[(1,t)]}, {Q[(1,t)]}, {z(S1)}")
        SD = S0 if Tq == 0 else S1
        ninf = g.vr("ninf")
        g(f"v_mov_b32 {ninf}, s21")
        for j in range(4):
            g(f"v_cmp_le_i32 vcc, {j}, {thr}")
            g(f"v_cndmask_b32 {SD[j]}, {ninf}, {SD[j]}, vcc")
        vals = [SM[j] for j in range(4)] + [S0[j] for j in range(4)] + ([S1[j] for j in range(4)] if Tq == 1 else [])
        m_, u_ = g.vr("m"), g.vr("u")
        g(f"v_max3_f32 {m_}, {vals[0]}, {vals[1]}, {vals[2]}")
        k = 3
        while k < len(vals):
            if k + 1 < len(vals): g(f"v_max3_f32 {m_}, {m_}, {vals[k]}, {vals[k+1]}"); k += 2
            else: g(f"v_max_f32 {m_}, {m_}, {vals[k]}"); k += 1
        for sw in ("32", "16"):
            g(f"v_mov_b32 {u_}, {m_}"); g(f"v_permlane{sw}_swap_b32 {m_}, {u_}"); g(f"v_max_f32 {m_}, {m_}, {u_}")
        g(f"v_mul_f32 {m_}, s20, {m_}")
        for x in vals:
            g(f"v_fma_f32 {x}, {x}, s20, -{m_}")
        for x in vals: g(f"v_exp_f32 {x}, {x}")
        P12, PM = g.vr("P12", 4), g.vr("PM", 2)
        g(f"v_cvt_pk_bf16_f32 {P12[0]}, {S0[0]}, {S0[1]}"); g(f"v_cvt_pk_bf16_f32 {P12[1]}, {S0[2]}, {S0[3]}")
        if Tq == 1:
            g(f"v_cvt_pk_bf16_f32 {P12[2]}, {S1[0]}, {S1[1]}"); g(f"v_cvt_pk_bf16_f32 {P12[3]}, {S1[2]}, {S1[3]}")
        else:
            g(f"v_mov_b32 {P12[2]}, 0"); g(f"v_mov_b32 {P12[3]}, 0")
        g(f"v_cvt_pk_bf16_f32 {PM[0]}, {SM[0]}, {SM[1]}"); g(f"v_cvt_pk_bf16_f32 {PM[1]}, {SM[2]}, {SM[3]}")
        L = g.vr("L", 4)
        g(f"{MF32} {L}, {ONE}, {P12}, 0")
        rl = g.vr("rl")
        O = {}
        for w in range(4):
            for par in range(2):
                O[(w, par)] = g.vr(f"O{w}{par}", 4)
                g(f"{MF32} {O[(w,par)]}, {V[(w,par)]}, {P12}, 0")
        g(f"{MF16} {L}, {HALF}, {PM}, {L}")
        for w in range(4):
            for par in range(2):
                g(f"{MF16} {O[(w,par)]}, {VM[w][2*par:2*par+2]}, {PM}, {O[(w,par)]}")
        g(f"v_rcp_f32 {rl}, {L[0]}")
        for w in range(4):
            pk = g.vr("pk", 4)
            for j in range(4):
                g(f"v_mul_f32 {O[(w,0)][j]}, {O[(w,0)][j]}, {rl}")
                g(f"v_mul_f32 {O[(w,1)][j]}, {O[(w,1)][j]}, {rl}")
                g(f"v_cvt_pk_bf16_f32 {pk[j]}, {O[(w,0)][j]}, {O[(w,1)][j]}")
            g(f"buffer_store_dwordx4 {pk}, v3, {SRD}, s17 offen offset:{w*1024}")
        if Tq == 0: g(f"s_add_u32 s17, s17, {128*1024}")
    g.finish()
    p.label(f"L_{name}_end")
    p("s_endpgm")
    return p.text() + kd(name, vgpr=256, accum=256), 4 * 2 * 1088
```

```python
from asmlib import *
from layout import WS_FLAG
D_XCC, D_TOTAL, D_FB, D_WORK, D_MOD, D_RINIT, D_ABORT = 0, 16, 17, 18, 19, 21, 22
F_LN1, F_KV, F_Q, F_ATT, F_WO, F_LN2, F_FFN1 = 0, 16, 32, 48, 64, 80, 96
F_REC, F_RECF = 112, 113
SDBG = "s[90:91]"
sWAVE = 92
SPIN = 400000
_uid = [0]
TRACE = False
SLEEP = 2

def _addr(p, where, idx, va, sa):
    if where == "dbg":
        p(f"v_mov_b32 {v(va)}, {idx*4}")
        return None
    if isinstance(idx, int): p(f"s_mov_b32 {s(sa)}, {WS_FLAG + idx*128}")
    else:
        base, sreg = idx
        p(f"s_lshl_b32 {s(sa)}, {sreg}, 7"); p(f"s_add_u32 {s(sa)}, {s(sa)}, {WS_FLAG + base*128}")
    p(f"v_mov_b32 {v(va)}, 0")

def wait_ge(p, where, idx, value, tmpv=(250, 251), tmps=(93, 94, 79)):
    _uid[0] += 1; u = _uid[0]
    va, vd = tmpv; sa, sb, so = tmps
    saved = (list(p.vm), p.vm_total, list(p.lgkm), set(p.smem_pending))
    p(f"s_cmp_lg_u32 {s(sWAVE)}, 0")
    p(f"s_cbranch_scc1 L_w{u}_done")
    _addr(p, where, idx, va, so)
    p(f"s_mov_b32 {s(sb)}, {SPIN}")
    p.label(f"L_w{u}_spin")
    if where == "dbg": p(f"global_load_dword {v(vd)}, {v(va)}, {SDBG} sc1")
    else: p(f"buffer_load_dword {v(vd)}, {v(va)}, s[4:7], {s(so)} offen sc1")
    p("s_waitcnt vmcnt(0)")
    p(f"v_readfirstlane_b32 {s(sa)}, {v(vd)}")
    p(f"s_cmp_ge_u32 {s(sa)}, {value}")
    p(f"s_cbranch_scc1 L_w{u}_done")
    p(f"s_sleep {SLEEP}")
    p(f"s_sub_u32 {s(sb)}, {s(sb)}, 1")
    p(f"s_cbranch_scc0 L_w{u}_spin")
    p.label(f"L_w{u}_done")
    p("s_barrier")
    if TRACE: p.raw("    s_memrealtime s[98:99]")
    p.vm, p.vm_total, p.lgkm, p.smem_pending = saved

def signal(p, where, idx, tmpv=(250, 251), tmps=(79,), drain=True):
    _uid[0] += 1; u = _uid[0]
    va, vd = tmpv; so = tmps[0]
    if drain:
        p("s_waitcnt vmcnt(0)")
        p("s_barrier")
    saved = (list(p.vm), p.vm_total)
    p(f"s_cmp_lg_u32 {s(sWAVE)}, 0")
    p(f"s_cbranch_scc1 L_s{u}_done")
    _addr(p, where, idx, va, so)
    p(f"v_mov_b32 {v(vd)}, 1")
    p("s_mov_b64 exec, 1")
    if where == "dbg": p(f"global_atomic_add {v(va)}, {v(vd)}, {SDBG}")
    else: p(f"buffer_atomic_add {v(vd)}, {v(va)}, s[4:7], {s(so)} offen")
    p("s_mov_b64 exec, -1")
    p.label(f"L_s{u}_done")
    p.vm, p.vm_total = saved
```

```python
from asmlib import *
from layout import *
from sync import *
from small import srd
MF32 = "v_mfma_f32_16x16x32_bf16"; MF16 = "v_mfma_f32_16x16x16_bf16"
SC = " sc1"
SRD = "s[4:7]"

def body_mod(p, N):
    p(f"s_load_dwordx2 s[12:13], s[0:1], {KA['c']}")
    p(f"s_load_dwordx2 s[14:15], s[0:1], {KA['wmod']}")
    p("s_waitcnt lgkmcnt(0)")
    srd(p, 16, 12, 1024); srd(p, 20, 14, 512 * 3072 * 2)
    p("v_lshlrev_b32 v1, 2, v0")
    p("buffer_load_dword v2, v1, s[16:19], 0 offen")
    p("v_lshrrev_b32 v3, 5, v0")
    p("v_and_b32 v4, 31, v0")
    p("v_mul_u32_u24 v5, 393216, v3")
    p("v_lshl_add_u32 v5, v4, 2, v5")
    p("s_lshl_b32 s3, s2, 7")
    for k in range(62):
        p(f"s_add_u32 s24, s3, {k*6144}")
        p(f"buffer_load_dword v{32+k}, v5, s[20:23], s24 offen")
    p("v_lshlrev_b32 v6, 16, v2")
    p("v_and_b32 v7, 0xffff0000, v2")
    for k in range(62, 64):
        p(f"s_add_u32 s24, s3, {k*6144}")
        p(f"buffer_load_dword v{32+k}, v5, s[20:23], s24 offen")
    for r in (6, 7):
        p(f"v_mul_f32 v8, 0xbfb8aa3b, v{r}")
        p("v_exp_f32 v8, v8"); p("v_add_f32 v8, 1.0, v8"); p("v_rcp_f32 v8, v8"); p(f"v_mul_f32 v{r}, v{r}, v8")
    p("v_cvt_pk_bf16_f32 v8, v6, v7")
    p("v_lshlrev_b32 v6, 16, v8"); p("v_and_b32 v7, 0xffff0000, v8")
    p("v_lshlrev_b32 v9, 3, v0")
    p("ds_write_b64 v9, v[6:7]")
    p("s_waitcnt lgkmcnt(0)"); p("s_barrier")
    p("v_lshlrev_b32 v10, 8, v3")
    p("v_mov_b32 v12, 0"); p("v_mov_b32 v13, 0")
    for k4 in range(16):
        p(f"ds_read_b128 v[16:19], v10 offset:{k4*16}")
        for i in range(4):
            k = k4 * 4 + i
            p(f"v_lshlrev_b32 v14, 16, v{32+k}"); p(f"v_and_b32 v15, 0xffff0000, v{32+k}")
            p(f"v_fmac_f32 v12, v{16+i}, v14"); p(f"v_fmac_f32 v13, v{16+i}, v15")
    p("v_lshlrev_b32 v10, 8, v3"); p("v_lshl_add_u32 v10, v4, 3, v10")
    p("ds_write_b64 v10, v[12:13] offset:2048")
    p("s_waitcnt lgkmcnt(0)"); p("s_barrier")
    p(f"s_cmp_lg_u32 {s(sWAVE)}, 0"); p(f"s_cbranch_scc1 L_{N}_sig")
    p("v_lshlrev_b32 v10, 2, v0")
    for k in range(8): p(f"ds_read_b32 v{16+k}, v10 offset:{2048 + k*256}")
    for k in range(1, 8): p(f"v_add_f32 v16, v16, v{16+k}")
    p("v_cvt_pk_bf16_f32 v16, v16, v16"); p("v_lshlrev_b32 v16, 16, v16")
    p("s_lshr_b32 s24, s2, 3")
    p("s_cmp_eq_u32 s24, 1"); p("s_cselect_b32 s25, 1, 0")
    p("s_cmp_eq_u32 s24, 4"); p("s_cselect_b32 s25, 1, s25")
    p("s_cmp_eq_u32 s25, 0"); p(f"s_cbranch_scc1 L_{N}_st")
    p("v_add_f32 v16, 1.0, v16"); p("v_cvt_pk_bf16_f32 v16, v16, v16"); p("v_lshlrev_b32 v16, 16, v16")
    p.label(f"L_{N}_st")
    p("s_lshl_b32 s3, s2, 8"); p(f"s_add_u32 s3, s3, {WS_MOD}")
    p(f"buffer_store_dword v16, v10, {SRD}, s3 offen{SC}")
    p.label(f"L_{N}_sig")
    p.flush_state()
    p("s_cmp_ge_u32 s2, 16"); p(f"s_cbranch_scc1 L_{N}_nz")
    p("v_lshlrev_b32 v1, 2, v0"); p("v_mov_b32 v2, 0")
    p("s_lshl_b32 s3, s2, 10"); p(f"s_add_u32 s3, s3, {WS_FLAG}")
    p(f"buffer_store_dword v2, v1, {SRD}, s3 offen{SC}")
    p.label(f"L_{N}_nz")
    signal(p, "dbg", D_MOD)

def xsum(p, r, t):
    p(f"v_mov_b32 {t}, {r}"); p(f"v_permlane32_swap_b32 {r}, {t}"); p(f"v_add_f32 {r}, {r}, {t}")
    p(f"v_mov_b32 {t}, {r}"); p(f"v_permlane16_swap_b32 {r}, {t}"); p(f"v_add_f32 {r}, {r}, {t}")

def body_ln(p, N, which):
    p(f"s_load_dwordx2 s[12:13], s[0:1], {KA['x']}")
    p("v_and_b32 v2, 63, v0")
    p("v_and_b32 v3, 15, v2"); p("v_lshrrev_b32 v4, 4, v2")
    p("s_waitcnt lgkmcnt(0)")
    srd(p, 16, 12, 2048 * 512 * 2)
    p("s_lshr_b32 s11, s2, 3")
    p("v_lshlrev_b32 v5, 10, v3"); p("v_lshl_add_u32 v5, v4, 4, v5")
    p(f"s_lshl_b32 s10, s2, 14"); p(f"s_lshl_b32 s9, {s(sWAVE)}, 8"); p("s_add_u32 s10, s10, s9")
    for t in range(4): p(f"buffer_load_dwordx4 {v(8+4*t,4)}, v5, s[16:19], s10 offen offset:{t*64}")
    if which == 1: wait_ge(p, "dbg", D_MOD, 48)
    X = 32
    p("v_lshlrev_b32 v6, 5, v4")
    p(f"s_lshl_b32 s13, {s(sWAVE)}, 9")
    shift_row, scale_row = (0, 1) if which == 1 else (3, 4)
    p(f"s_add_u32 s20, s13, {WS_MOD + shift_row*2048}"); p(f"s_add_u32 s21, s13, {WS_MOD + scale_row*2048}")
    SH, SCL = 64, 96
    for t in range(4):
        for hf in range(2):
            p(f"buffer_load_dwordx4 {v(SH+8*t+4*hf,4)}, v6, {SRD}, s20 offen offset:{t*128+hf*16}{SC}")
            p(f"buffer_load_dwordx4 {v(SCL+8*t+4*hf,4)}, v6, {SRD}, s21 offen offset:{t*128+hf*16}{SC}")
    if which == 2:
        p("v_lshlrev_b32 v7, 11, v3"); p("v_lshl_add_u32 v7, v4, 5, v7")
        p("s_lshl_b32 s14, s2, 15"); p("s_add_u32 s14, s14, s13")
        p(f"s_add_u32 s22, s13, {WS_MOD + 2*2048}")
        GA = 128
        for t in range(4):
            for hf in range(2): p(f"buffer_load_dwordx4 {v(GA+8*t+4*hf,4)}, v6, {SRD}, s22 offen offset:{t*128+hf*16}{SC}")
        PB = 160
        for rnd in range(2):
            for sp in range(2):
                p(f"s_add_u32 s23, s14, {WS_PW + (rnd*2+sp) * 4 * MB}")
                for t in range(4):
                    for hf in range(2):
                        dst = (PB if rnd == 0 else 0)
                        p(f"buffer_load_dwordx4 {R('v' if rnd == 0 else 'a', dst + sp*32 + 8*t + 4*hf, 4)}, v7, {SRD}, s23 offen offset:{t*128+hf*16}{SC}")
    for t in range(4):
        for d in range(4):
            p(f"v_lshlrev_b32 {v(X+8*t+2*d)}, 16, {v(8+4*t+d)}")
            p(f"v_and_b32 {v(X+8*t+2*d+1)}, 0xffff0000, {v(8+4*t+d)}")
    if which == 2:
        for e in range(32):
            p(f"v_add_f32 {v(160+e)}, {v(160+e)}, {v(192+e)}")
        for e in range(32):
            p(f"v_accvgpr_read_b32 v8, {a(e)}"); p(f"v_accvgpr_read_b32 v9, {a(32+e)}")
            p("v_add_f32 v8, v8, v9")
            p(f"v_add_f32 {v(160+e)}, {v(160+e)}, v8")
            p(f"v_fmac_f32 {v(X+e)}, {v(128+e)}, {v(160+e)}")
        p(f"s_add_u32 s23, s14, {WS_X1}")
        for t in range(4):
            for hf in range(2): p(f"buffer_store_dwordx4 {v(X+8*t+4*hf,4)}, v7, {SRD}, s23 offen offset:{t*128+hf*16}{SC}")
    def wg_sum(r, off):
        xsum(p, r, "v10")
        p("v_lshlrev_b32 v11, 2, v3"); p(f"s_lshl_b32 s24, {s(sWAVE)}, 6"); p("v_add_u32 v12, s24, v11")
        p(f"ds_write_b32 v12, {r} offset:{off}")
        p("s_waitcnt lgkmcnt(0)"); p("s_barrier")
        for k in range(4): p(f"ds_read_b32 {v(12+k)}, v11 offset:{off + k*64}")
        p("v_add_f32 v12, v12, v13"); p("v_add_f32 v14, v14, v15"); p(f"v_add_f32 {r}, v12, v14")
    p(f"v_add_f32 v8, {v(X)}, {v(X+1)}"); p(f"v_add_f32 v9, {v(X+2)}, {v(X+3)}")
    for e in range(4, 32, 2):
        p(f"v_add_f32 v8, v8, {v(X+e)}"); p(f"v_add_f32 v9, v9, {v(X+e+1)}")
    p("v_add_f32 v8, v8, v9")
    wg_sum("v8", 0)
    p("v_mul_f32 v8, 0x3b000000, v8")
    for e in range(32): p(f"v_sub_f32 {v(X+e)}, {v(X+e)}, v8")
    p(f"v_mul_f32 v9, {v(X)}, {v(X)}"); p(f"v_mul_f32 v16, {v(X+1)}, {v(X+1)}")
    for e in range(2, 32, 2):
        p(f"v_fmac_f32 v9, {v(X+e)}, {v(X+e)}"); p(f"v_fmac_f32 v16, {v(X+e+1)}, {v(X+e+1)}")
    p("v_add_f32 v9, v9, v16")
    wg_sum("v9", 256)
    p("v_mov_b32 v11, 0x3727c5ac"); p("v_fmac_f32 v11, 0x3b000000, v9"); p("v_rsq_f32 v11, v11")
    p(f"s_lshl_b32 s22, s2, 14"); p(f"s_lshl_b32 s24, {s(sWAVE)}, 12"); p("s_add_u32 s22, s22, s24")
    p(f"s_add_u32 s22, s22, {WS_H if which == 1 else WS_H2}")
    p("v_lshlrev_b32 v7, 4, v2")
    for t in range(4):
        for e in range(8):
            p(f"v_mul_f32 {v(X+8*t+e)}, {v(X+8*t+e)}, v11")
            p(f"v_fma_f32 {v(X+8*t+e)}, {v(X+8*t+e)}, {v(SCL+8*t+e)}, {v(SH+8*t+e)}")
        for d in range(4): p(f"v_cvt_pk_bf16_f32 {v(16+4*(t%2)+d)}, {v(X+8*t+2*d)}, {v(X+8*t+2*d+1)}")
        p(f"buffer_store_dwordx4 {v(16+4*(t%2),4)}, v7, {SRD}, s22 offen offset:{t*1024}{SC}")
    signal(p, "ws", (F_LN1, "s11"))

def body_att(p, N):
    p("v_and_b32 v2, 63, v0")
    p("s_lshr_b32 s22, s2, 5")
    p("s_lshr_b32 s23, s2, 3")
    p("s_and_b32 s24, s2, 7"); p("s_lshl_b32 s24, s24, 2"); p(f"s_add_u32 s24, s24, {s(sWAVE)}")
    p("s_lshl_b32 s9, s23, 5"); p("s_add_u32 s9, s9, s24")
    p("v_lshlrev_b32 v3, 4, v2"); p("v_and_b32 v4, 15, v2"); p("v_lshrrev_b32 v5, 4, v2")
    p("s_lshl_b32 s10, s9, 13")
    p(f"s_add_u32 s11, s10, {WS_QX}"); p(f"s_add_u32 s12, s10, {WS_KX}"); p(f"s_add_u32 s13, s10, {WS_VX}")
    p("s_lshl_b32 s14, s9, 11"); p(f"s_add_u32 s14, s14, {WS_KM}")
    p("s_lshl_b32 s15, s9, 12"); p(f"s_add_u32 s15, s15, {WS_VM}")
    wait_ge(p, "ws", (F_Q, "s22"), 32)
    g = Region(p, list(range(8, 250)))
    HS = 1088
    Q = {(T, t): g.vr(f"Q{T}{t}", 4) for T in range(2) for t in range(4)}
    K = {(T, t): g.vr(f"K{T}{t}", 4) for T in range(2) for t in range(4)}
    def ld8(D, sreg):
        for i, key in enumerate(sorted(D)):
            if i == 4: g(f"s_add_u32 {sreg}, {sreg}, 4096")
            g(f"buffer_load_dwordx4 {D[key]}, v3, {SRD}, {sreg} offen offset:{(i%4)*1024}{SC}")
    ld8(Q, "s11"); ld8(K, "s12")
    V = {(w, par): g.vr(f"V{w}{par}", 4) for w in range(4) for par in range(2)}
    ld8(V, "s13")
    g.raw("WAITREC")
    kraw = [g.vr(f"kr{w}", 2) for w in range(4)]
    h8 = g.vr("h8")
    g(f"v_lshrrev_b32 {h8}, 1, v3")
    for w in range(4): g(f"buffer_load_dwordx2 {kraw[w]}, {h8}, {SRD}, s14 offen offset:{w*512}{SC}")
    VM = [g.vr(f"VM{w}", 4) for w in range(4)]
    for w in range(4): g(f"buffer_load_dwordx4 {VM[w]}, v3, {SRD}, s15 offen offset:{w*1024}{SC}")
    wa, ra, tt = g.vr("wa"), g.vr("ra"), g.vr("tt")
    g(f"s_mul_i32 s16, {s(sWAVE)}, {2*HS}")
    g(f"v_and_b32 {wa}, 1, v5"); g(f"v_mul_u32_u24 {wa}, {HS}, {wa}")
    g(f"v_lshrrev_b32 {tt}, 1, v5"); g(f"v_lshl_add_u32 {tt}, v4, 1, {tt}")
    g(f"v_lshl_add_u32 {wa}, {tt}, 3, {wa}"); g(f"v_add_u32 {wa}, s16, {wa}")
    for w in range(4): g(f"ds_write_b64 {wa}, {kraw[w]} offset:{w*256}")
    g(f"v_and_b32 {ra}, 1, v2"); g(f"v_mul_u32_u24 {ra}, {HS}, {ra}")
    g(f"v_lshrrev_b32 {tt}, 2, v4"); g(f"v_lshl_add_u32 {tt}, v5, 2, {tt}")
    g(f"v_lshl_add_u32 {ra}, {tt}, 3, {ra}"); g(f"v_add_u32 {ra}, s16, {ra}")
    g("s_waitcnt lgkmcnt(0)")
    KM = [g.vr(f"KM{t}", 4) for t in range(4)]
    for t in range(4):
        for u in range(2): g(f"ds_read_b64_tr_b16 {KM[t][2*u:2*u+2]}, {ra} offset:{(32*t+16*u)*8}")
    thr = g.vr("thr")
    g(f"v_lshlrev_b32 {thr}, 2, v5"); g(f"v_sub_u32 {thr}, v4, {thr}")
    ONE, HALF = g.vr("ONE", 4), g.vr("HALF", 2)
    for i in range(4): g(f"v_mov_b32 {ONE[i]}, 0x3f803f80")
    for i in range(2): g(f"v_mov_b32 {HALF[i]}, 0x3f003f00")
    g("s_mov_b32 s20, 0x3e0293ee"); g("s_mov_b32 s21, 0xff800000")
    g("s_lshl_b32 s17, s23, 18"); g("s_lshl_b32 s18, s24, 12")
    g("s_add_u32 s17, s17, s18"); g(f"s_add_u32 s17, s17, {WS_O}")
    for Tq in range(2):
        SM, S0, S1 = g.vr("SM", 4), g.vr("S0", 4), g.vr("S1", 4)
        for t in range(4):
            z = lambda D: "0" if t == 0 else str(D)
            g(f"{MF32} {S0}, {K[(0,t)]}, {Q[(Tq,t)]}, {z(S0)}")
            if Tq == 1: g(f"{MF32} {S1}, {K[(1,t)]}, {Q[(1,t)]}, {z(S1)}")
        for t in range(4):
            g(f"{MF32} {SM}, {KM[t]}, {Q[(Tq,t)]}, {'0' if t == 0 else SM}")
        SD = S0 if Tq == 0 else S1
        ninf = g.vr("ninf")
        g(f"v_mov_b32 {ninf}, s21")
        for j in range(4):
            g(f"v_cmp_le_i32 vcc, {j}, {thr}")
            g(f"v_cndmask_b32 {SD[j]}, {ninf}, {SD[j]}, vcc")
        vals = [S0[j] for j in range(4)] + ([S1[j] for j in range(4)] if Tq == 1 else []) + [SM[j] for j in range(4)]
        m_, u_ = g.vr("m"), g.vr("u")
        g(f"v_max3_f32 {m_}, {vals[0]}, {vals[1]}, {vals[2]}")
        k = 3
        while k < len(vals):
            if k + 1 < len(vals): g(f"v_max3_f32 {m_}, {m_}, {vals[k]}, {vals[k+1]}"); k += 2
            else: g(f"v_max_f32 {m_}, {m_}, {vals[k]}"); k += 1
        for sw in ("32", "16"):
            g(f"v_mov_b32 {u_}, {m_}"); g(f"v_permlane{sw}_swap_b32 {m_}, {u_}"); g(f"v_max_f32 {m_}, {m_}, {u_}")
        g(f"v_mul_f32 {m_}, s20, {m_}")
        for x in vals: g(f"v_fma_f32 {x}, {x}, s20, -{m_}")
        for x in vals: g(f"v_exp_f32 {x}, {x}")
        P12, PM = g.vr("P12", 4), g.vr("PM", 2)
        g(f"v_cvt_pk_bf16_f32 {P12[0]}, {S0[0]}, {S0[1]}"); g(f"v_cvt_pk_bf16_f32 {P12[1]}, {S0[2]}, {S0[3]}")
        if Tq == 1:
            g(f"v_cvt_pk_bf16_f32 {P12[2]}, {S1[0]}, {S1[1]}"); g(f"v_cvt_pk_bf16_f32 {P12[3]}, {S1[2]}, {S1[3]}")
        else:
            g(f"v_mov_b32 {P12[2]}, 0"); g(f"v_mov_b32 {P12[3]}, 0")
        g(f"v_cvt_pk_bf16_f32 {PM[0]}, {SM[0]}, {SM[1]}"); g(f"v_cvt_pk_bf16_f32 {PM[1]}, {SM[2]}, {SM[3]}")
        L = g.vr("L", 4)
        g(f"{MF32} {L}, {ONE}, {P12}, 0")
        rl = g.vr("rl")
        O = {}
        for w in range(4):
            for par in range(2):
                O[(w, par)] = g.vr(f"O{w}{par}", 4)
                g(f"{MF32} {O[(w,par)]}, {V[(w,par)]}, {P12}, 0")
        g(f"{MF16} {L}, {HALF}, {PM}, {L}")
        for w in range(4):
            for par in range(2):
                g(f"{MF16} {O[(w,par)]}, {VM[w][2*par:2*par+2]}, {PM}, {O[(w,par)]}")
        g(f"v_rcp_f32 {rl}, {L[0]}")
        for w in range(4):
            pk = g.vr("pk", 4)
            for j in range(4):
                g(f"v_mul_f32 {O[(w,0)][j]}, {O[(w,0)][j]}, {rl}")
                g(f"v_mul_f32 {O[(w,1)][j]}, {O[(w,1)][j]}, {rl}")
                g(f"v_cvt_pk_bf16_f32 {pk[j]}, {O[(w,0)][j]}, {O[(w,1)][j]}")
            g(f"buffer_store_dwordx4 {pk}, v3, {SRD}, s17 offen offset:{w*1024}{SC}")
        if Tq == 0: g(f"s_add_u32 s17, s17, {128*1024}")
    class P2:
        pass
    orig_raw = p.raw
    def raw_hook(text):
        if text == "WAITREC":
            p.raw = orig_raw
            p("s_add_u32 s26, s23, 1")
            p("s_cmp_eq_u32 s23, 63"); p(f"s_cselect_b32 s27, 1, 0"); p("s_cselect_b32 s26, 32, s26")
            wait_ge(p, "ws", (F_REC, "s27"), "s26")
            p.raw = raw_hook
        else: orig_raw(text)
    p.raw = raw_hook
    g.finish()
    p.raw = orig_raw
    signal(p, "ws", (F_ATT, "s22"))
```

```python
import sys
sys.path.insert(0, "gen")
from asmlib import *
from layout import *
from sync import *
import rec, tasks, gemm2, gemm3
NAME = "adaLN_cond__memory_aug_recurrent_mem_tr__dense_activation_gelu__prompt"
HEADER = open("cdna_kernels/" + NAME + ".s.ref").read().split("; Override launch geometry")[0]
NWORK = 224
sTASK = 95

def gen_mega(name, opt=None, post=True):
    opt = opt or {}
    THR = 33 if opt.get("force_slow") else 32
    p = Prog()
    p.raw(f".p2align 8\n.type {name},@function\n{name}:")
    p("s_cmp_ge_u32 s2, 256"); p(f"s_cbranch_scc1 L_{name}_exit")
    p(f"s_load_dwordx2 {SDBG}, s[0:1], {KA['dbg']}")
    p(f"s_load_dwordx2 s[4:5], s[0:1], {KA['ws']}")
    p("s_getreg_b32 s3, hwreg(HW_REG_XCC_ID)")
    p("s_and_b32 s3, s3, 15")
    if opt.get("fake_xcc"): p(f"s_and_b32 s3, s2, {opt['fake_xcc']-1}")
    p("v_lshrrev_b32 v1, 6, v0")
    p(f"v_readfirstlane_b32 {s(sWAVE)}, v1")
    p("s_waitcnt lgkmcnt(0)")
    p(f"s_mov_b32 s6, {WS_BYTES}"); p("s_mov_b32 s7, 0x00020000")
    p(f"s_cmp_lg_u32 {s(sWAVE)}, 0")
    p(f"s_cbranch_scc1 L_{name}_el_wait")
    p("s_mov_b64 exec, 1")
    p("v_mov_b32 v2, 1")
    p("s_lshl_b32 s10, s3, 2"); p("v_mov_b32 v3, s10")
    p(f"global_atomic_add v4, v3, v2, {SDBG} sc0")
    p("s_waitcnt vmcnt(0)")
    p(f"v_mov_b32 v3, {D_TOTAL*4}")
    p(f"global_atomic_add v5, v3, v2, {SDBG} sc0")
    p("s_waitcnt vmcnt(0)")
    p("v_readfirstlane_b32 s10, v4")
    p("s_lshl_b32 s14, s3, 8"); p("s_or_b32 s14, s14, s10")
    p("s_cmp_lg_u32 s3, 0"); p(f"s_cbranch_scc1 L_{name}_el_other")
    p(f"s_cmp_lt_u32 s10, 32"); p(f"s_cbranch_scc1 L_{name}_el_pub")
    p.label(f"L_{name}_el_other")
    p(f"s_mov_b32 s11, {SPIN}")
    p.label(f"L_{name}_el_spin")
    p(f"v_mov_b32 v3, {D_TOTAL*4}")
    p(f"global_load_dword v5, v3, {SDBG} sc1")
    p("s_waitcnt vmcnt(0)")
    p("v_mov_b32 v3, 0")
    p(f"global_load_dword v4, v3, {SDBG} sc1")
    p("s_waitcnt vmcnt(0)")
    p("v_readfirstlane_b32 s12, v4"); p("v_readfirstlane_b32 s13, v5")
    p(f"s_cmp_ge_u32 s12, 32"); p(f"s_cbranch_scc1 L_{name}_el_work")
    p("s_cmp_ge_u32 s13, 256"); p(f"s_cbranch_scc1 L_{name}_el_fb")
    p("s_sleep 2")
    p("s_sub_u32 s11, s11, 1"); p(f"s_cbranch_scc0 L_{name}_el_spin")
    p("s_mov_b32 s10, 0x1000"); p(f"s_branch L_{name}_el_pub")
    p.label(f"L_{name}_el_fb")
    p(f"v_mov_b32 v3, {D_FB*4}")
    p(f"global_atomic_add v4, v3, v2, {SDBG} sc0")
    p("s_waitcnt vmcnt(0)")
    p("v_readfirstlane_b32 s10, v4")
    p("s_add_u32 s10, s10, s12")
    p("s_cmp_lt_u32 s10, 32"); p(f"s_cbranch_scc1 L_{name}_el_pub")
    p.label(f"L_{name}_el_work")
    p(f"v_mov_b32 v3, {D_WORK*4}")
    p(f"global_atomic_add v4, v3, v2, {SDBG} sc0")
    p("s_waitcnt vmcnt(0)")
    p("v_readfirstlane_b32 s10, v4")
    p("s_add_u32 s10, s10, 0x100")
    p.label(f"L_{name}_el_pub")
    p("v_mov_b32 v4, s10"); p("v_mov_b32 v5, s14"); p("v_mov_b32 v3, 0")
    p("ds_write_b64 v3, v[4:5]")
    p("s_mov_b64 exec, -1")
    p.label(f"L_{name}_el_wait")
    p("s_waitcnt vmcnt(0) lgkmcnt(0)")
    p("s_barrier")
    p("v_mov_b32 v3, 0")
    p("ds_read_b64 v[4:5], v3")
    p("s_waitcnt lgkmcnt(0)")
    p("v_readfirstlane_b32 s8, v4")
    p("v_readfirstlane_b32 s89, v5")
    p("s_barrier")
    p.flush_state()
    p("s_cmp_lt_u32 s8, 32"); p(f"s_cbranch_scc1 L_{name}_rec")
    p("s_cmp_ge_u32 s8, 0x1000"); p(f"s_cbranch_scc1 L_{name}_exit")
    p(f"s_sub_u32 {s(sTASK)}, s8, 0x100")
    p("v_accvgpr_write_b32 a255, v0")
    def trace(slot_sreg_expr_code, tag):
        if not opt.get("trace"): return
        p.raw("    s_memrealtime s[100:101]")
        p("s_waitcnt lgkmcnt(0)")
        p(f"s_cmp_lg_u32 {s(sWAVE)}, 0"); p(f"s_cbranch_scc1 L_{name}_tr_{tag}")
        slot_sreg_expr_code()
        p("v_mov_b32 v240, s96"); p("v_mov_b32 v241, s98"); p("v_mov_b32 v242, s100"); p(f"v_mov_b32 v243, s88")
        p(f"s_lshl_b32 s88, s88, 4"); p(f"s_add_u32 s88, s88, {WS_DBG + (1<<20)}")
        p("v_mov_b32 v244, 0"); p("s_mov_b64 exec, 1")
        p("buffer_store_dwordx4 v[240:243], v244, s[4:7], s88 offen")
        p("s_mov_b64 exec, -1")
        p.label(f"L_{name}_tr_{tag}")
        p.raw("    s_memrealtime s[96:97]")
    def fin():
        p("s_waitcnt vmcnt(0) lgkmcnt(0)"); p("s_barrier"); p.flush_state()
        p("v_accvgpr_read_b32 v0, a255")
    if opt.get("trace"): p.raw("    s_memrealtime s[96:97]"); p.raw("    s_mov_b32 s98, 0")
    p(f"s_cmp_lt_u32 {s(sTASK)}, 48"); p(f"s_cbranch_scc1 L_{name}_t_mod")
    p(f"s_cmp_lt_u32 {s(sTASK)}, 176"); p(f"s_cbranch_scc1 L_{name}_t_ln1")
    p(f"s_branch L_{name}_ph2")
    p.label(f"L_{name}_t_mod")
    p(f"s_mov_b32 s2, {s(sTASK)}")
    tasks.body_mod(p, name + "_mod"); fin()
    trace(lambda: p(f"s_mov_b32 s88, {s(sTASK)}"), "mod")
    p(f"s_branch L_{name}_ph2")
    p.label(f"L_{name}_t_ln1")
    p.flush_state()
    p(f"s_sub_u32 s2, {s(sTASK)}, 48")
    tasks.body_ln(p, name + "_ln1", 1); fin()
    trace(lambda: p(f"s_mov_b32 s88, {s(sTASK)}"), "ln1")
    p.label(f"L_{name}_ph2")
    p.flush_state()
    wait_ge(p, "dbg", D_TOTAL, 256)
    wait_ge(p, "dbg", D_MOD, 48)
    p("v_and_b32 v2, 63, v0"); p("v_lshlrev_b32 v3, 2, v2"); p("v_min_u32 v3, 28, v3")
    p(f"global_load_dword v4, v3, {SDBG} sc1")
    p("s_waitcnt vmcnt(0)")
    p("v_cmp_ne_u32 vcc, 32, v4")
    p("s_nop 4")
    p("s_cmp_eq_u64 vcc, 0")
    p("s_lshr_b32 s8, s89, 8"); p("s_and_b32 s9, s89, 0xff")
    p("s_sub_u32 s8, s8, 1"); p("s_lshl_b32 s8, s8, 5"); p("s_add_u32 s8, s8, s9")
    p("s_cmp_eq_u64 vcc, 0")
    p(f"s_cselect_b32 {s(sTASK)}, s8, {s(sTASK)}")
    if opt.get("force_slow") or opt.get("fake_xcc"): pass
    p(f"s_lshr_b32 s84, {s(sTASK)}, 5"); p(f"s_and_b32 s85, {s(sTASK)}, 31")
    p("s_cmp_lt_u32 s84, 4"); p("s_cselect_b32 s86, 5, 4")
    p.label(f"L_{name}_qloop")
    p("s_lshl_b32 s8, s86, 4"); p("s_cmp_ge_u32 s85, s8"); p(f"s_cbranch_scc1 L_{name}_ph3")
    p("s_cmp_eq_u32 s86, 5"); p("s_cselect_b32 s9, 0x33333334, 0x40000000")
    p("s_mul_hi_u32 s9, s85, s9")
    p("s_mul_i32 s10, s9, s86"); p("s_sub_u32 s10, s85, s10"); p("s_mul_i32 s10, s10, 7"); p("s_add_u32 s10, s10, s84")
    p("s_lshl_b32 s2, s9, 5"); p("s_add_u32 s2, s2, s10")
    p("s_mov_b32 s87, s2")
    p.flush_state()
    gemm2.body_gemm(p, name + "_qkv", "qkv"); fin()
    trace(lambda: p("s_add_u32 s88, s87, 176"), "qkv")
    p("s_add_u32 s85, s85, 32")
    p(f"s_branch L_{name}_qloop")
    p.label(f"L_{name}_ph3")
    p.flush_state()
    p(f"s_and_b32 s8, {s(sTASK)}, 31"); p("s_mul_i32 s8, s8, 7"); p(f"s_lshr_b32 s9, {s(sTASK)}, 5"); p("s_add_u32 s8, s8, s9")
    roles = [("att", 32), ("wo", 32), ("ln2", 32), ("ffn1", 11), ("ffn2", 32)]
    base = 0
    for k, n in roles:
        p(f"s_sub_u32 s2, s8, {base}"); p(f"s_cmp_lt_u32 s8, {base + n}"); p(f"s_cbranch_scc1 L_{name}_r_{k}")
        base += n
    p(f"s_branch L_{name}_exit")
    tbase = 688
    def tr_role(k, ri, n, tbreg):
        rb = sum(x for _, x in roles[:ri])
        trace(lambda: (p(f"s_add_u32 s88, s83, {rb}"), p("s_lshl_b32 s88, s88, 4"), p(f"s_add_u32 s88, s88, {tbreg}"), p(f"s_add_u32 s88, s88, {tbase}")), k)
    p.label(f"L_{name}_r_att"); p.flush_state()
    p("s_mov_b32 s83, s2"); p("s_mov_b32 s82, 0")
    p.label(f"L_{name}_attloop")
    p("s_lshl_b32 s2, s82, 5"); p("s_add_u32 s2, s2, s83")
    tasks.body_att(p, name + "_att"); fin()
    tr_role("att", 0, 32, "s82")
    p("s_add_u32 s82, s82, 1"); p("s_cmp_lt_u32 s82, 16"); p(f"s_cbranch_scc1 L_{name}_attloop")
    p(f"s_branch L_{name}_exit")
    for ri, k in ((1, "wo"), (3, "ffn1"), (4, "ffn2")):
        p.label(f"L_{name}_r_{k}"); p.flush_state()
        p("s_mov_b32 s83, s2")
        p.trace_point = lambda N_, ri=ri, k=k: tr_role(k, ri, 0, "s16")
        gemm3.role_gemm(p, name + "_" + k, k)
        p(f"s_branch L_{name}_exit")
    p.label(f"L_{name}_r_ln2"); p.flush_state()
    p("s_mov_b32 s83, s2")
    p.trace_point = lambda N_: tr_role("ln2", 2, 0, "s30")
    gemm3.role_ln2(p, name + "_ln2")
    p.label(f"L_{name}_exit")
    p("s_endpgm")
    p.label(f"L_{name}_rec")
    p.flush_state()
    rec.gen_rec(name + "_r", opt=opt, prog=p, stamps=bool(opt.get("stamps")))
    return p

def build(path, opt=None):
    n = NAME + "_kernel"
    p = gen_mega(n, opt)
    out = HEADER + f"; @launch grid=(256,1,1) block=(256,1,1) lds={rec.LDS_BYTES}\n"
    out += '.amdgcn_target "amdgcn-amd-amdhsa--gfx950"\n.text\n' + f".globl {n}\n" + p.text() + kd(n).replace(".end_amdhsa_kernel\n.text\n", ".end_amdhsa_kernel\n")
    open(path, "w").write(out)
    return p

if __name__ == "__main__":
    base = {"h1depth": 1, "h2depth": 1, "d1": 16}
    build("mega_st.s", dict(base, stamps=1))
    import sync
    sync.TRACE = True
    build("mega_tr.s", dict(base, trace=1))
    sync.TRACE = False
    p = build("mega.s", base)
    print(p.stats)
```

```python
from asmlib import *
from layout import *
from sync import *
from small import srd
MF32 = "v_mfma_f32_16x16x32_bf16"
SC = " sc1"
SRD = "s[4:7]"

def body_gemm(p, N, kind):
    MATS = dict(qkv=[0, 1, 2], kq=[0], v=[1])[kind]
    NT, CK, KS, ldb, KTOT, nb = 8, 4, 16, 8192, 16, 512 * 4096 * 2
    RB = 256; CHB = CK * 32 * RB; NBUF = 4
    NDMA = CHB // 1024 // 4; NCH = KS // CK; RPI = 4; LPR = 16
    W = s(sWAVE)
    SBs = ["s[12:15]", "s[40:43]", "s[44:47]"]
    for i, k in enumerate(("Wk", "Wv", "Wq")): p(f"s_load_dwordx2 {s(60+2*i,2)}, s[0:1], {KA[k]}")
    if kind == "kq":
        p("s_waitcnt lgkmcnt(0)")
        p("s_cmp_eq_u32 s88, 0"); p("s_cselect_b32 s60, s60, s64"); p("s_cselect_b32 s61, s61, s65")
        p(f"s_mov_b32 s38, {WS_QX}"); p(f"s_cselect_b32 s38, {WS_KX}, s38")
    p("v_and_b32 v2, 63, v0")
    p("s_lshr_b32 s16, s2, 5"); p("s_and_b32 s17, s2, 31")
    p(f"s_lshl_b32 s9, s16, 3"); p(f"s_lshl_b32 s18, {W}, 1"); p("s_add_u32 s9, s9, s18")
    p("s_lshl_b32 s10, s17, 7")
    vL16 = 3
    p(f"v_lshlrev_b32 {v(vL16)}, 4, v2")
    p("v_and_b32 v4, 15, v2"); p("v_lshrrev_b32 v5, 4, v2")
    period = 4; vD = 8
    p("v_lshrrev_b32 v6, 4, v2"); p("v_and_b32 v7, 15, v2")
    p(f"s_mov_b32 s20, {ldb}")
    for q in range(period):
        d = vD + q
        p(f"v_add_u32 {v(d)}, {q*RPI}, v6")
        p(f"v_and_b32 v20, 3, {v(d)}"); p(f"v_bfe_u32 v21, {v(d)}, 3, 1"); p("v_lshl_or_b32 v20, v21, 2, v20")
        p("v_lshrrev_b32 v21, 1, v7"); p("v_xor_b32 v21, v21, v20"); p("v_and_b32 v22, 1, v7")
        p("v_lshl_or_b32 v21, v21, 1, v22")
        p(f"v_mul_lo_u32 {v(d)}, {v(d)}, s20")
        p(f"v_lshl_add_u32 {v(d)}, v21, 4, {v(d)}")
    vR, vR2 = 12, 24
    p("v_lshrrev_b32 v20, 2, v4")
    p("v_lshl_add_u32 v21, v5, 3, v20")
    p("v_and_b32 v22, 1, v5"); p("v_lshl_or_b32 v22, v22, 2, v20")
    p(f"v_mul_u32_u24 v21, {RB}, v21")
    p("v_and_b32 v23, 3, v2"); p("v_lshl_add_u32 v21, v23, 3, v21")
    for ct in range(NT):
        p(f"v_xor_b32 v23, {ct}, v22")
        p(f"v_lshl_add_u32 {v(vR+ct)}, v23, 5, v21")
        p(f"v_add_u32 {v(vR2+ct)}, 0x10000, {v(vR+ct)}")
    p("v_and_b32 v32, 1, v4"); p("v_lshlrev_b32 v32, 10, v32")
    p("v_lshl_add_u32 v32, v5, 8, v32")
    p("v_lshrrev_b32 v21, 1, v4"); p("v_lshl_add_u32 v32, v21, 4, v32")
    ACCS = [36, 100]
    BF = 164; NBF = 8
    TMP = BF + NBF * 4
    p("s_waitcnt lgkmcnt(0)")
    for m in MATS: srd(p, int(SBs[m][2:4]), 60 + 2 * m, nb)
    p(f"s_mul_i32 s28, {W}, {NDMA*RPI*ldb}")
    p("s_lshl_b32 s29, s10, 1"); p("s_add_u32 s28, s28, s29")
    p(f"s_mul_i32 s30, {W}, {NDMA*1024}")
    p("s_lshr_b32 s36, s9, 1"); p("s_lshl_b32 s36, s36, 5"); p("s_add_u32 s36, s36, s17"); p("s_lshl_b32 s36, s36, 13")
    chunks = [(m, c) for m in MATS for c in range(NCH)]
    def dma(i):
        m, c = chunks[i]
        p(f"s_add_u32 s31, s28, {c*CK*32*ldb}")
        p(f"s_add_u32 m0, s30, {(i % NBUF)*CHB}")
        for q in range(NDMA):
            if q:
                p("s_add_u32 m0, m0, 1024")
                if q % period == 0: p(f"s_add_u32 s31, s31, {period*RPI*ldb}")
            p(f"buffer_load_dwordx4 {v(vD + q % period)}, {SBs[m]}, s31 offen lds")
    marks = {}
    p("s_barrier")
    for i in range(3): dma(i); marks[i] = p.vm_mark()
    wait_ge(p, "ws", (F_LN1, "s16"), 8)
    p(f"s_mul_i32 s23, s9, {KTOT*1024}"); p(f"s_add_u32 s23, s23, {WS_H}"); p(f"s_add_u32 s24, s23, {KTOT*1024}")
    for t in range(16):
        for T in range(2):
            if t % 4 == 0 and t: p(f"s_add_u32 {s(23+T)}, {s(23+T)}, 4096")
            p(f"buffer_load_dwordx4 {a((T*16+t)*4, 4)}, {v(vL16)}, {SRD}, {s(23+T)} offen offset:{(t%4)*1024}{SC}")
    acc = lambda m, ct, T: ACCS[m % 2] + (ct*2+T)*4
    multi = len(MATS) > 1
    seq = [(i, t, ct) for i in range(len(chunks)) for t in range(CK) for ct in range(NT)]
    per = CK * NT
    def rd(k):
        i, t, ct = seq[k]; r = BF + (k % NBF) * 4
        off = (i % NBUF) * CHB + t * 32 * RB
        for u in range(2):
            o = off + u * 4 * RB
            if o < 65536: p(f"ds_read_b64_tr_b16 {v(r+2*u,2)}, {v(vR+ct)} offset:{o}")
            else: p(f"ds_read_b64_tr_b16 {v(r+2*u,2)}, {v(vR2+ct)} offset:{o-65536}")
    def epi(m):
        out = []
        if m != 1:
            dst = "s38" if kind == "kq" else (WS_KX if m == 0 else WS_QX)
            out.append(f"s_add_u32 s37, s36, {dst}")
            for T in range(2):
                for t in range(4):
                    pk = TMP + 4 * ((T*4+t) % 4)
                    a0, a1 = acc(m, 2*t, T), acc(m, 2*t+1, T)
                    out += [f"v_cvt_pk_bf16_f32 {v(pk)}, {v(a0)}, {v(a0+1)}", f"v_cvt_pk_bf16_f32 {v(pk+1)}, {v(a0+2)}, {v(a0+3)}",
                            f"v_cvt_pk_bf16_f32 {v(pk+2)}, {v(a1)}, {v(a1+1)}", f"v_cvt_pk_bf16_f32 {v(pk+3)}, {v(a1+2)}, {v(a1+3)}",
                            f"buffer_store_dwordx4 {v(pk,4)}, {v(vL16)}, {SRD}, s37 offen offset:{t*1024}{SC}"]
                if T == 0: out.append("s_add_u32 s37, s37, 4096")
        else:
            out.append(f"s_add_u32 s37, s36, {WS_VX}")
            for ct in range(8):
                pk = TMP + 4 * (ct % 4)
                a0, a1 = acc(m, ct, 0), acc(m, ct, 1)
                out += [f"v_cvt_pk_bf16_f32 {v(pk)}, {v(a0)}, {v(a0+1)}", f"v_cvt_pk_bf16_f32 {v(pk+1)}, {v(a0+2)}, {v(a0+3)}",
                        f"v_cvt_pk_bf16_f32 {v(pk+2)}, {v(a1)}, {v(a1+1)}", f"v_cvt_pk_bf16_f32 {v(pk+3)}, {v(a1+2)}, {v(a1+3)}"]
                if ct == 4: out.append("s_add_u32 s37, s37, 4096")
                out.append(f"buffer_store_dwordx4 {v(pk,4)}, v32, {SRD}, s37 offen offset:{((ct//2)%2)*2048 + (ct%2)*128}{SC}")
        return out
    LA = NBF - 2
    def sync(i):
        p.vm_wait(marks[i]); p("s_barrier")
        if i + 2 < len(chunks) and (i + 2) not in marks: dma(i + 2); marks[i + 2] = p.vm_mark()
    sync(0)
    for k in range(LA): rd(k)
    pend = []
    st_mark = {}
    for k, (i, t, ct) in enumerate(seq):
        m, c = chunks[i]
        if multi and k % per == 0 and c == 0 and m > 0: pend = epi(m - 1)
        r = BF + (k % NBF) * 4
        for T in range(2):
            a_ = a((T*16 + c*CK + t)*4, 4); ac = v(acc(m, ct, T), 4)
            cin = "0" if (c == 0 and t == 0) else ac
            if m == 1: p(f"{MF32} {ac}, {a_}, {v(r,4)}, {cin}")
            else:      p(f"{MF32} {ac}, {v(r,4)}, {a_}, {cin}")
            if T == 0:
                nk = k + LA
                if nk < len(seq):
                    if nk % per == 0:
                        ci = seq[nk][0]
                        if multi and ci == 10:
                            assert 1 in st_mark
                            p.vm_wait(st_mark[1])
                        sync(ci)
                        if multi and ci == 10: signal(p, "ws", (F_KV, "s16"), drain=False, val=2)
                    rd(nk)
            if pend and not (c == 0 and t == 0 and ct < 2):
                p(pend.pop(0))
                if not pend: st_mark[m - 1] = p.vm_mark()
    for x in epi(MATS[-1]): p(x)
    if kind == "qkv": signal(p, "ws", (F_Q, "s16"))
    elif kind == "v": signal(p, "ws", (F_KV, "s16"))
    else:
        p(f"s_cmp_eq_u32 s88, 0"); p(f"s_cselect_b32 s39, {F_KV}, {F_Q}"); p("s_add_u32 s39, s39, s16")
        signal(p, "ws", (0, "s39"))
```

```python
from asmlib import *
from layout import *
from sync import *
from small import srd
MF32 = "v_mfma_f32_16x16x32_bf16"
SC = " sc1"
SRD = "s[4:7]"
WOSPLIT = 8

CFG = {
    "wo":   dict(TA=1, NT=8, korder="N", KS=16, ldb=1024, A=WS_O,  KTOT=128, nb=4096*512*2, nrole=64),
    "ffn1": dict(TA=1, NT=8, korder="N", KS=16, ldb=2752, A=WS_H2, KTOT=16,  nb=512*1376*2, nrole=22),
    "ffn2": dict(TA=1, NT=2, korder="D", KS=43, ldb=1024, A=WS_F,  KTOT=43,  nb=1376*512*2, nrole=32),
}

def role_gemm(p, N, kind):
    cfg = CFG[kind]
    TA, NT, KS, ldb, KTOT, nb = (cfg[k] for k in ("TA", "NT", "KS", "ldb", "KTOT", "nb"))
    BN = NT * 16; RB = BN * 2
    ROWS = ((KS * 32 + 63) // 64) * 64
    RPI = 1024 // RB; LPR = RB // 16
    NI = ROWS * RB // 1024
    W = s(sWAVE)
    p(f"s_load_dwordx2 s[60:61], s[0:1], {KA[dict(wo='Wo', ffn1='w1', ffn2='w2')[kind]]}")
    if kind == "ffn1": p(f"s_load_dwordx2 s[66:67], s[0:1], {KA['b1']}")
    if kind == "ffn2":
        p(f"s_load_dwordx2 s[66:67], s[0:1], {KA['b2']}")
        p(f"s_load_dwordx2 s[68:69], s[0:1], {KA['out']}")
    p("v_and_b32 v2, 63, v0")
    if kind == "wo":
        p("s_lshr_b32 s17, s2, 4"); p("s_bfe_u32 s21, s2, 0x30001"); p("s_and_b32 s19, s2, 1")
        p("s_lshl_b32 s10, s17, 7"); p(f"s_mul_i32 s11, s21, {KS}"); p("s_mov_b32 s22, s21")
    elif kind == "ffn1":
        p("s_lshr_b32 s17, s2, 1"); p("s_and_b32 s19, s2, 1")
        p("s_lshl_b32 s10, s17, 7"); p("s_mov_b32 s11, 0")
    else:
        p("s_lshr_b32 s17, s2, 1"); p("s_and_b32 s19, s2, 1")
        p("s_lshl_b32 s10, s17, 5"); p("s_mov_b32 s11, 0")
    vL16, vn, vg = 3, 4, 5
    p(f"v_lshlrev_b32 {v(vL16)}, 4, v2")
    p(f"v_and_b32 {v(vn)}, 15, v2"); p(f"v_lshrrev_b32 {v(vg)}, 4, v2")
    def fcode(dst, rowreg):
        if cfg["korder"] == "N":
            p(f"v_and_b32 {dst}, 3, {rowreg}"); p(f"v_bfe_u32 v21, {rowreg}, 3, 1"); p(f"v_lshl_or_b32 {dst}, v21, 2, {dst}")
        else:
            p(f"v_bfe_u32 {dst}, {rowreg}, 2, 1")
    period = max(1, 16 // RPI)
    vD = 8
    p(f"v_lshrrev_b32 v6, {LPR.bit_length()-1}, v2")
    p(f"v_and_b32 v7, {LPR-1}, v2")
    p(f"s_mov_b32 s20, {ldb}")
    for q in range(period):
        d = vD + q
        p(f"v_add_u32 {v(d)}, {q*RPI}, v6")
        fcode("v20", v(d))
        p("v_lshrrev_b32 v21, 1, v7"); p("v_xor_b32 v21, v21, v20"); p("v_and_b32 v22, 1, v7")
        p("v_lshl_or_b32 v21, v21, 1, v22")
        p(f"v_mul_lo_u32 {v(d)}, {v(d)}, s20")
        p(f"v_lshl_add_u32 {v(d)}, v21, 4, {v(d)}")
    vR = 12; vR2 = 24
    p("v_lshrrev_b32 v20, 2, v4")
    if cfg["korder"] == "N":
        p("v_lshl_add_u32 v23, v5, 3, v20"); UOFF = 4 * RB
    else:
        p("v_lshl_add_u32 v23, v5, 2, v20"); UOFF = 16 * RB
    fcode("v22", "v23")
    p(f"v_mul_u32_u24 v21, {RB}, v23")
    p("v_and_b32 v23, 3, v2"); p("v_lshl_add_u32 v21, v23, 3, v21")
    for ct in range(NT):
        p(f"v_xor_b32 v23, {ct}, v22")
        p(f"v_lshl_add_u32 {v(vR+ct)}, v23, 5, v21")
        p(f"v_add_u32 {v(vR2+ct)}, 0x10000, {v(vR+ct)}")
    p("s_waitcnt lgkmcnt(0)")
    srd(p, 12, 60, nb)
    ngrp = NI // period
    assert NI % period == 0
    p("s_lshl_b32 s29, s10, 1"); p(f"s_mul_i32 s28, s11, {32*ldb}"); p("s_add_u32 s28, s28, s29")
    p(f"s_mul_i32 s29, {W}, {period*RPI*ldb}"); p("s_add_u32 s28, s28, s29")
    p(f"s_mul_i32 s30, {W}, {period*1024}")
    p("s_barrier")
    for gi in range((ngrp + 3) // 4):
        if (gi * 4 + 3) >= ngrp:
            p(f"s_cmp_ge_u32 {W}, {ngrp - gi*4}"); p(f"s_cbranch_scc1 L_{N}_dmaend")
        p(f"s_add_u32 s31, s28, {gi*4*period*RPI*ldb}")
        p(f"s_add_u32 m0, s30, {gi*4*period*1024}")
        for q in range(period):
            if q: p("s_add_u32 m0, m0, 1024")
            p(f"buffer_load_dwordx4 {v(vD+q)}, s[12:15], s31 offen lds")
    p.label(f"L_{N}_dmaend")
    p.flush_state()
    ACC = 32
    BF = ACC + TA * NT * 4
    NBF = 8
    TMP = BF + NBF * 4
    acc = lambda ct, T: ACC + (ct*TA+T)*4
    if kind == "ffn1":
        srd(p, 48, 66, 1376 * 2)
        p("v_lshlrev_b32 v20, 3, v5"); p("s_lshl_b32 s37, s10, 1")
        BI = TMP + 16
        for ct in range(NT): p(f"buffer_load_dwordx2 {v(BI+2*ct,2)}, v20, s[48:51], s37 offen offset:{ct*32}")
    if kind == "ffn2":
        srd(p, 48, 66, 512 * 2); srd(p, 52, 68, 2048 * 512 * 2)
        p("v_lshlrev_b32 v20, 3, v5"); p("s_lshl_b32 s37, s10, 1")
        BI = TMP + 16
        for ct in range(NT): p(f"buffer_load_dwordx2 {v(BI+2*ct,2)}, v20, s[48:51], s37 offen offset:{ct*32}")
    p("s_waitcnt vmcnt(0)")
    p("s_barrier")
    p.flush_state()
    p("s_mov_b32 s16, 0")
    p.label(f"L_{N}_loop")
    p("s_add_u32 s33, s16, 1")
    if kind == "wo": wait_all(p, A_ATT, 32, "s33")
    elif kind == "ffn1": wait_all(p, A_LN2, 32, "s33")
    else: wait_all(p, A_FFN1, 22, "s33")
    p.flush_state()
    if TA == 2: p(f"s_lshl_b32 s9, s16, 3"); p(f"s_lshl_b32 s18, {W}, 1"); p("s_add_u32 s9, s9, s18")
    else:       p(f"s_lshl_b32 s9, s16, 3"); p("s_lshl_b32 s18, s19, 2"); p("s_add_u32 s9, s9, s18"); p(f"s_add_u32 s9, s9, {W}")
    p(f"s_mul_i32 s23, s9, {KTOT*1024}"); p("s_lshl_b32 s24, s11, 10"); p("s_add_u32 s23, s23, s24")
    p(f"s_add_u32 s23, s23, {cfg['A']}"); p(f"s_add_u32 s24, s23, {KTOT*1024}")
    for t in range(KS):
        for T in range(TA):
            if t % 4 == 0 and t: p(f"s_add_u32 {s(23+T)}, {s(23+T)}, 4096")
            p(f"buffer_load_dwordx4 {a((T*KS+t)*4, 4)}, {v(vL16)}, {SRD}, {s(23+T)} offen offset:{(t%4)*1024}{SC}")
    if kind == "ffn2":
        p("v_lshlrev_b32 v21, 4, v5"); p("s_lshl_b32 s38, s10, 2"); p(f"s_add_u32 s38, s38, {WS_MOD + 5*2048}")
        p("v_lshlrev_b32 v22, 11, v4"); p("v_lshl_add_u32 v22, v5, 4, v22")
        p("s_lshl_b32 s39, s9, 15"); p("s_lshl_b32 s56, s10, 2"); p("s_add_u32 s39, s39, s56"); p(f"s_add_u32 s39, s39, {WS_X1}")
        for ct in range(NT):
            p(f"buffer_load_dwordx4 {v(TMP+24+4*ct,4)}, v21, {SRD}, s38 offen offset:{ct*64}{SC}")
            p(f"buffer_load_dwordx4 {v(TMP+32+4*ct,4)}, v22, {SRD}, s39 offen offset:{ct*64}{SC}")
    seq = [(t, ct) for t in range(KS) for ct in range(NT)]
    def rd(k):
        t, ct = seq[k]; r = BF + (k % NBF) * 4
        for u in range(2):
            o = t * 32 * RB + u * UOFF
            if o < 65536: p(f"ds_read_b64_tr_b16 {v(r+2*u,2)}, {v(vR+ct)} offset:{o}")
            else: p(f"ds_read_b64_tr_b16 {v(r+2*u,2)}, {v(vR2+ct)} offset:{o-65536}")
    LA = NBF - 2
    for k in range(LA): rd(k)
    for k, (t, ct) in enumerate(seq):
        r = BF + (k % NBF) * 4
        for T in range(TA):
            ac = v(acc(ct, T), 4)
            p(f"{MF32} {ac}, {v(r,4)}, {a((T*KS+t)*4, 4)}, {'0' if t == 0 else ac}")
            if T == 0 and k + LA < len(seq): rd(k + LA)
    if kind == "wo":
        p("s_lshl_b32 s36, s22, 22"); p("s_lshl_b32 s37, s9, 15"); p("s_add_u32 s36, s36, s37")
        p("s_lshl_b32 s37, s10, 2"); p("s_add_u32 s36, s36, s37"); p(f"s_add_u32 s36, s36, {WS_PW}")
        p("v_lshlrev_b32 v20, 11, v4"); p("v_lshl_add_u32 v20, v5, 4, v20")
        for ct in range(NT):
            p(f"buffer_store_dwordx4 {v(acc(ct,0),4)}, v20, {SRD}, s36 offen offset:{ct*64}{SC}")
        signal_own(p, A_WO, "s83", "s33")
    elif kind == "ffn1":
        p(f"s_mul_i32 s36, s9, {43*1024}"); p("s_lshr_b32 s38, s10, 5"); p("s_lshl_b32 s39, s38, 10")
        p("s_add_u32 s36, s36, s39"); p(f"s_add_u32 s36, s36, {WS_F}")
        p("s_mov_b32 s52, 0x3d372713"); p("s_mov_b32 s53, 0x40135761")
        for T in range(TA):
            for u in range(4):
                pk = TMP + 4 * (u % 2)
                for half, ct in enumerate((2*u, 2*u+1)):
                    a0 = acc(ct, T)
                    ts = [v(TMP + 8 + j) for j in range(4)]
                    for j in range(4):
                        b = v(BI + 2*ct + j//2)
                        if j % 2 == 0: p(f"v_lshlrev_b32 {ts[j]}, 16, {b}")
                        else: p(f"v_and_b32 {ts[j]}, 0xffff0000, {b}")
                    for j in range(4): p(f"v_add_f32 {v(a0+j)}, {v(a0+j)}, {ts[j]}")
                    for j in range(4): p(f"v_mul_f32 {ts[j]}, {v(a0+j)}, {v(a0+j)}")
                    for j in range(4): p(f"v_fma_f32 {ts[j]}, {ts[j]}, s52, 1.0")
                    for j in range(4): p(f"v_mul_f32 {ts[j]}, {ts[j]}, {v(a0+j)}")
                    for j in range(4): p(f"v_mul_f32 {ts[j]}, s53, {ts[j]}")
                    for j in range(4): p(f"v_exp_f32 {ts[j]}, -{ts[j]}")
                    for j in range(4): p(f"v_add_f32 {ts[j]}, 1.0, {ts[j]}")
                    for j in range(4): p(f"v_rcp_f32 {ts[j]}, {ts[j]}")
                    for j in range(4): p(f"v_mul_f32 {v(a0+j)}, {v(a0+j)}, {ts[j]}")
                    p(f"v_cvt_pk_bf16_f32 {v(pk+2*half)}, {v(a0)}, {v(a0+1)}")
                    p(f"v_cvt_pk_bf16_f32 {v(pk+2*half+1)}, {v(a0+2)}, {v(a0+3)}")
                p(f"s_add_u32 s39, s38, {u}"); p("s_cmp_ge_u32 s39, 43"); p(f"s_cbranch_scc1 L_{N}_sk{T}{u}")
                p(f"buffer_store_dwordx4 {v(pk,4)}, {v(vL16)}, {SRD}, s36 offen offset:{u*1024}{SC}")
                p.label(f"L_{N}_sk{T}{u}")
        signal_own(p, A_FFN1, "s83", "s33")
    else:
        p("v_lshlrev_b32 v23, 10, v4"); p("v_lshl_add_u32 v23, v5, 3, v23")
        p("s_lshl_b32 s57, s9, 14"); p("s_lshl_b32 s56, s10, 1"); p("s_add_u32 s57, s57, s56")
        for ct in range(NT):
            a0 = acc(ct, 0)
            for j in range(4):
                b = v(BI + 2*ct + j//2); t1 = v(TMP + 8)
                if j % 2 == 0: p(f"v_lshlrev_b32 {t1}, 16, {b}")
                else: p(f"v_and_b32 {t1}, 0xffff0000, {b}")
                p(f"v_add_f32 {v(a0+j)}, {v(a0+j)}, {t1}")
                p(f"v_fma_f32 {v(a0+j)}, {v(a0+j)}, {v(TMP+24+4*ct+j)}, {v(TMP+32+4*ct+j)}")
            p(f"v_cvt_pk_bf16_f32 {v(TMP+10)}, {v(a0)}, {v(a0+1)}"); p(f"v_cvt_pk_bf16_f32 {v(TMP+11)}, {v(a0+2)}, {v(a0+3)}")
            p(f"buffer_store_dwordx2 {v(TMP+10,2)}, v23, s[52:55], s57 offen offset:{ct*32}")
    p.trace_point(N) if hasattr(p, "trace_point") else None
    p("s_add_u32 s16, s16, 1"); p("s_cmp_lt_u32 s16, 16"); p(f"s_cbranch_scc1 L_{N}_loop")
    p("s_waitcnt vmcnt(0)")

def role_ln2(p, N):
    W = s(sWAVE)
    p(f"s_load_dwordx2 s[12:13], s[0:1], {KA['x']}")
    p("v_and_b32 v2, 63, v0")
    p("s_waitcnt lgkmcnt(0)")
    srd(p, 16, 12, 2048 * 512 * 2)
    p("v_lshlrev_b32 v5, 4, v2")
    p("v_lshlrev_b32 v6, 5, v2")
    wait_ge(p, "dbg", D_MOD, 48)
    p.flush_state()
    GA, SH, SCL = 16, 24, 32
    for reg, row in ((GA, 2), (SH, 3), (SCL, 4)):
        p(f"s_mov_b32 s20, {WS_MOD + row*2048}")
        for hf in range(2): p(f"buffer_load_dwordx4 {v(reg+4*hf,4)}, v6, {SRD}, s20 offen offset:{hf*16}{SC}")
    p("v_lshrrev_b32 v7, 2, v2"); p("v_lshlrev_b32 v7, 10, v7"); p("v_and_b32 v8, 3, v2"); p("v_lshl_add_u32 v7, v8, 8, v7")
    p("s_mov_b32 s30, 0")
    p.label(f"L_{N}_loop")
    p("s_lshl_b32 s9, s30, 7"); p("s_lshl_b32 s10, s2, 2"); p("s_add_u32 s9, s9, s10"); p(f"s_add_u32 s9, s9, {W}")
    p("s_lshl_b32 s10, s9, 10")
    p("buffer_load_dwordx4 v[8:11], v5, s[16:19], s10 offen")
    p("s_add_u32 s33, s30, 1")
    wait_all(p, A_WO, 64, "s33")
    p("s_lshl_b32 s11, s9, 11")
    PB = 64
    for sp in range(WOSPLIT):
        p(f"s_add_u32 s23, s11, {WS_PW + sp * 4 * MB}")
        for hf in range(2): p(f"buffer_load_dwordx4 {v(PB+8*sp+4*hf,4)}, v6, {SRD}, s23 offen offset:{hf*16}{SC}")
    X = 40
    for d in range(4):
        p(f"v_lshlrev_b32 {v(X+2*d)}, 16, {v(8+d)}"); p(f"v_and_b32 {v(X+2*d+1)}, 0xffff0000, {v(8+d)}")
    for sp in range(1, WOSPLIT):
        for e in range(8): p(f"v_add_f32 {v(PB+e)}, {v(PB+e)}, {v(PB+8*sp+e)}")
    for e in range(8): p(f"v_fmac_f32 {v(X+e)}, {v(GA+e)}, {v(PB+e)}")
    p(f"s_add_u32 s23, s11, {WS_X1}")
    for hf in range(2): p(f"buffer_store_dwordx4 {v(X+4*hf,4)}, v6, {SRD}, s23 offen offset:{hf*16}{SC}")
    def wsum(r):
        for sh in (1, 2, 4, 8):
            p(f"v_add_f32_dpp {r}, {r}, {r} row_ror:{sh} row_mask:0xf bank_mask:0xf")
        p(f"v_mov_b32 v12, {r}"); p(f"v_permlane16_swap_b32 {r}, v12"); p(f"v_add_f32 {r}, {r}, v12")
        p(f"v_mov_b32 v12, {r}"); p(f"v_permlane32_swap_b32 {r}, v12"); p(f"v_add_f32 {r}, {r}, v12")
    p(f"v_add_f32 v13, {v(X)}, {v(X+1)}")
    for e in range(2, 8): p(f"v_add_f32 v13, v13, {v(X+e)}")
    wsum("v13")
    p("v_mul_f32 v13, 0x3b000000, v13")
    for e in range(8): p(f"v_sub_f32 {v(X+e)}, {v(X+e)}, v13")
    p(f"v_mul_f32 v14, {v(X)}, {v(X)}")
    for e in range(1, 8): p(f"v_fmac_f32 v14, {v(X+e)}, {v(X+e)}")
    wsum("v14")
    p("v_mov_b32 v15, 0x3727c5ac"); p("v_fmac_f32 v15, 0x3b000000, v14"); p("v_rsq_f32 v15, v15")
    for e in range(8):
        p(f"v_mul_f32 {v(X+e)}, {v(X+e)}, v15")
        p(f"v_fma_f32 {v(X+e)}, {v(X+e)}, {v(SCL+e)}, {v(SH+e)}")
    for d in range(4): p(f"v_cvt_pk_bf16_f32 {v(48+d)}, {v(X+2*d)}, {v(X+2*d+1)}")
    p("s_lshr_b32 s12, s9, 4"); p("s_lshl_b32 s12, s12, 14"); p("s_and_b32 s13, s9, 15"); p("s_lshl_b32 s13, s13, 4")
    p("s_add_u32 s12, s12, s13"); p(f"s_add_u32 s12, s12, {WS_H2}")
    p(f"buffer_store_dwordx4 v[48:51], v7, {SRD}, s12 offen{SC}")
    signal_own(p, A_LN2, "s83", "s33")
    p.trace_point(N) if hasattr(p, "trace_point") else None
    p("s_add_u32 s30, s30, 1"); p("s_cmp_lt_u32 s30, 16"); p(f"s_cbranch_scc1 L_{N}_loop")
```

```python
from asmlib import *
from layout import *
from sync import D_RINIT, D_MOD, D_ABORT, F_KV, F_REC, F_RECF

L_BUF  = 0
L_MEM  = 32768
L_OI   = 40960
HS     = 1088
L_QI   = 45056
L_KI   = L_QI + 2176
L_SEL  = 49664
L_ONE, L_HALF, L_ZERO = L_SEL + 1024, L_SEL + 2048, L_SEL + 3072
L_WL   = L_SEL + 4096
LDS_BYTES = L_WL + 4 * 24576

vL16, vIdx, vA, vQw, vQr, vH1s, vH1l, vPub, vBuf = range(9)
RES = 96
AWV, AWO = 0, 128

sH, sW, sStep, sTag = 8, 9, 10, 11
sMpoll, sMpub, sMrst = 12, 13, 14
sSpin = 15
sPst = 16
sPld = 18
sKX, sVX, sKM, sVM = 24, 25, 26, 27
sM0K, sM0V = 28, 29
sFirst = 30
sWL = 31
sPubMask = 32
sO = 34
sC = 38
sSRDW = 40
sT0, sT1, sT2, sT3 = 44, 45, 46, 47
sW2k = 50
sKVok = 51
sMrst2 = sMrst
SPIN_MAX = 100000
NST = 16

def wl_off(t, m): return (t * 2 + m) * 2048
def wres(t, m):
    assert t >= 6
    return RES + ((t - 6) * 2 + m) * 8
def mem_col_scalar(j, d):
    return 128 * (j // 8) + 64 * ((j // 4) % 2) + 8 * (j % 4) + 32 * (d % 2) + 2 * ((d % 4) // 2)

def gen_rec(name, stamps=False, st_mod="", nsteps=64, opt=None, prog=None):
    opt = opt or {}
    mega = prog is not None
    NHEAD_THR = 33 if opt.get("force_slow") else 32
    p = prog if mega else Prog()
    SRD = "s[4:7]"
    DS = " sc1" if mega else ""
    if not mega: p.raw(f".p2align 8\n.type {name},@function\n{name}:")
    if mega:
        p(f"s_load_dwordx2 s[56:57], s[0:1], {KA['dbg']}")
    else:
        p(f"s_cmp_ge_u32 s2, 256")
        p(f"s_cbranch_scc1 L_{name}_end")
        p(f"s_load_dwordx2 s[56:57], s[0:1], {KA['dbg']}")
        p("s_getreg_b32 s3, hwreg(HW_REG_XCC_ID)")
        p("s_and_b32 s3, s3, 15")
        if opt.get("fake_xcc"): p(f"s_and_b32 s3, s2, {opt['fake_xcc']-1}")
        p("v_lshrrev_b32 v1, 6, v0")
        p("v_readfirstlane_b32 s9, v1")
        p("s_waitcnt lgkmcnt(0)")
        p("s_cmp_lg_u32 s9, 0")
        p(f"s_cbranch_scc1 L_{name}_el_wait")
        p("s_mov_b64 exec, 1")
        p("v_mov_b32 v2, 1")
        p("s_lshl_b32 s10, s3, 2")
        p("v_mov_b32 v3, s10")
        p("global_atomic_add v4, v3, v2, s[56:57] sc0")
        p("s_waitcnt vmcnt(0)")
        p("v_mov_b32 v3, 64")
        p("global_atomic_add v5, v3, v2, s[56:57] sc0")
        p("s_waitcnt vmcnt(0)")
        p("v_readfirstlane_b32 s10, v4")
        p("s_cmp_lg_u32 s3, 0")
        p(f"s_cbranch_scc1 L_{name}_el_other")
        p(f"s_cmp_lt_u32 s10, {NHEAD_THR}")
        p(f"s_cbranch_scc1 L_{name}_el_pub")
        p.label(f"L_{name}_el_other")
        p(f"s_mov_b32 s11, {SPIN_MAX}")
        p.label(f"L_{name}_el_spin")
        p("v_mov_b32 v3, 64")
        p("global_load_dword v5, v3, s[56:57] sc1")
        p("s_waitcnt vmcnt(0)")
        p("v_mov_b32 v3, 0")
        p("global_load_dword v4, v3, s[56:57] sc1")
        p("s_waitcnt vmcnt(0)")
        p("v_readfirstlane_b32 s12, v4")
        p("v_readfirstlane_b32 s13, v5")
        p("s_mov_b32 s10, -1")
        p(f"s_cmp_ge_u32 s12, {NHEAD_THR}")
        p(f"s_cbranch_scc1 L_{name}_el_pub")
        p("s_cmp_ge_u32 s13, 256")
        p(f"s_cbranch_scc1 L_{name}_el_fb")
        p("s_sleep 8")
        p("s_sub_u32 s11, s11, 1")
        p(f"s_cbranch_scc0 L_{name}_el_spin")
        p(f"s_branch L_{name}_el_pub")
        p.label(f"L_{name}_el_fb")
        p("v_mov_b32 v3, 68")
        p("global_atomic_add v4, v3, v2, s[56:57] sc0")
        p("s_waitcnt vmcnt(0)")
        p("v_readfirstlane_b32 s10, v4")
        p("s_add_u32 s10, s10, s12")
        p.label(f"L_{name}_el_pub")
        p("v_mov_b32 v2, s10")
        p("v_mov_b32 v3, 0")
        p("ds_write_b32 v3, v2")
        p("s_mov_b64 exec, -1")
        p.label(f"L_{name}_el_wait")
        p("s_waitcnt vmcnt(0) lgkmcnt(0)")
        p("s_barrier")
        p("v_mov_b32 v3, 0")
        p("ds_read_b32 v2, v3")
        p("s_waitcnt lgkmcnt(0)")
        p(f"v_readfirstlane_b32 {s(sH)}, v2")
        p("s_barrier")
        p(f"s_cmp_ge_u32 {s(sH)}, 32")
        p(f"s_cbranch_scc1 L_{name}_end")
        p.flush_state()
    if not stamps: p.raw("    s_memrealtime s[96:97]")
    p(f"s_load_dwordx2 s[4:5], s[0:1], {KA['ws']}")
    p(f"s_load_dwordx2 s[60:61], s[0:1], {KA['Wq']}")
    p(f"s_load_dwordx2 s[62:63], s[0:1], {KA['Wk']}")
    p(f"s_load_dwordx2 s[64:65], s[0:1], {KA['Wv']}")
    p(f"s_load_dwordx2 s[66:67], s[0:1], {KA['Wo']}")
    p(f"s_load_dwordx2 s[68:69], s[0:1], {KA['mem0']}")
    p(f"v_mov_b32 v11, v0")
    p(f"v_lshrrev_b32 v12, 6, v0")
    p(f"v_readfirstlane_b32 {s(sW)}, v12")
    p(f"v_and_b32 v13, 63, v0")
    p(f"s_waitcnt lgkmcnt(0)")
    p(f"s_mov_b32 s6, {WS_BYTES}")
    p(f"s_mov_b32 s7, 0x00020000")
    p(f"v_and_b32 v14, 15, v13")
    p(f"v_lshrrev_b32 v15, 4, v13")
    p(f"v_lshlrev_b32 {v(vL16)}, 4, v13")
    p(f"v_mov_b32 v16, 0x8888")
    p(f"v_mov_b32 v17, 0xdddd")
    p(f"v_cmp_gt_u32 vcc, 8, v14")
    p(f"v_cndmask_b32 {v(vIdx)}, v17, v16, vcc")
    p(f"v_and_b32 v16, 7, v14")
    p(f"v_lshlrev_b32 v16, 4, v16")
    p(f"v_lshl_add_u32 {v(vA)}, v15, 7, v16")
    p(f"s_mul_i32 {s(sWL)}, {s(sW)}, 24576")
    p(f"s_add_u32 {s(sWL)}, {s(sWL)}, {L_WL}")
    p(f"v_and_b32 v16, 1, v15")
    p(f"v_mul_u32_u24 v16, {HS}, v16")
    p(f"v_lshrrev_b32 v17, 1, v15")
    p(f"v_lshl_add_u32 v17, v14, 1, v17")
    p(f"s_lshl_b32 {s(sT0)}, {s(sW)}, 5")
    p(f"v_add_u32 v17, {s(sT0)}, v17")
    p(f"v_lshl_add_u32 v16, v17, 3, v16")
    p(f"v_add_u32 {v(vQw)}, {L_QI}, v16")
    p(f"v_and_b32 v16, 1, v13")
    p(f"v_mul_u32_u24 v16, {HS}, v16")
    p(f"v_lshrrev_b32 v17, 2, v14")
    p(f"v_lshl_add_u32 v17, v15, 2, v17")
    p(f"v_lshl_add_u32 v16, v17, 3, v16")
    p(f"v_add_u32 {v(vQr)}, {L_QI}, v16")
    p(f"v_lshrrev_b32 v16, 2, v14")
    p(f"s_lshl_b32 {s(sT0)}, {s(sW)}, 3")
    p(f"v_add_u32 v16, {s(sT0)}, v16")
    p(f"v_lshlrev_b32 v16, 13, v16")
    p(f"v_lshl_add_u32 v16, v15, 11, v16")
    p(f"v_and_b32 v17, 3, v14")
    p(f"v_lshl_add_u32 v16, v17, 4, v16")
    p(f"s_and_b32 {s(sT0)}, {s(sH)}, 1")
    p(f"s_lshl_b32 {s(sT0)}, {s(sT0)}, 10")
    p(f"s_lshr_b32 {s(sT1)}, {s(sH)}, 1")
    p(f"s_lshl_b32 {s(sT1)}, {s(sT1)}, 6")
    p(f"s_add_u32 {s(sT0)}, {s(sT0)}, {s(sT1)}")
    p(f"v_add_u32 {v(vH1s)}, {s(sT0)}, v16")
    p(f"s_lshl_b32 {s(sT0)}, {s(sH)}, 13")
    p(f"s_lshl_b32 {s(sT1)}, {s(sW)}, 11")
    p(f"s_add_u32 {s(sT0)}, {s(sT0)}, {s(sT1)}")
    p(f"v_add_u32 {v(vH1l)}, {s(sT0)}, {v(vL16)}")
    p(f"v_lshlrev_b32 v16, 4, v15")
    p(f"v_and_b32 v17, 3, v13")
    p(f"v_lshl_add_u32 v16, v17, 2, v16")
    p(f"s_lshr_b32 {s(sT0)}, {s(sH)}, 1")
    p(f"s_lshl_b32 {s(sT0)}, {s(sT0)}, 9")
    p(f"s_and_b32 {s(sT1)}, {s(sH)}, 1")
    p(f"s_lshl_b32 {s(sT1)}, {s(sT1)}, 8")
    p(f"s_add_u32 {s(sT0)}, {s(sT0)}, {s(sT1)}")
    p(f"s_lshr_b32 {s(sT1)}, {s(sW)}, 1")
    p(f"s_lshl_b32 {s(sT1)}, {s(sT1)}, 7")
    p(f"s_add_u32 {s(sT0)}, {s(sT0)}, {s(sT1)}")
    p(f"s_and_b32 {s(sT1)}, {s(sW)}, 1")
    p(f"s_lshl_b32 {s(sT1)}, {s(sT1)}, 6")
    p(f"s_add_u32 {s(sT0)}, {s(sT0)}, {s(sT1)}")
    p(f"v_add_u32 {v(vPub)}, {s(sT0)}, v16")
    p(f"v_mov_b32 {v(vBuf)}, {v(vL16)}")
    p(f"v_and_b32 v16, 3, v14")
    p(f"v_lshrrev_b32 v17, 2, v14")
    p(f"v_lshrrev_b32 v19, 1, v17")
    p(f"v_lshl_add_u32 v19, v16, 1, v19")
    p(f"v_and_b32 v17, 1, v17")
    p(f"v_lshlrev_b32 v17, 4, v17")
    p(f"v_mov_b32 v20, 0x3f80")
    p(f"v_lshlrev_b32 v20, v17, v20")
    for i in range(4):
        p(f"v_cmp_eq_u32 vcc, {i}, v19")
        p(f"v_cndmask_b32 {v(24+i)}, 0, v20, vcc")
    p(f"v_add_u32 v21, {L_SEL}, {v(vL16)}")
    p(f"ds_write_b128 v21, v[24:27]")
    for k_, val in enumerate((0x3f803f80, 0x3f003f00, 0)):
        for i in range(4): p(f"v_mov_b32 {v(28+i)}, {hex(val)}")
        p(f"ds_write_b128 v21, v[28:31] offset:{1024*(k_+1)}")
    p(f"s_lshr_b32 {s(sT1)}, {s(sH)}, 2")
    for q2 in range(2):
        p(f"s_add_u32 {s(sT0)}, {s(sH)}, {q2}")
        p(f"s_and_b32 {s(sT0)}, {s(sT0)}, 1")
        p(f"s_lshl_b32 {s(sT0)}, {s(sT0)}, 15")
        p(f"s_add_u32 {s(sPst+q2)}, {s(sT0)}, {WS_P}")
        p(f"s_add_u32 {s(sT0)}, {s(sT1)}, {q2}")
        p(f"s_and_b32 {s(sT0)}, {s(sT0)}, 1")
        p(f"s_lshl_b32 {s(sT0)}, {s(sT0)}, 10")
        p(f"s_add_u32 {s(sPld+q2)}, {s(sT0)}, {WS_P}")
    p(f"s_mov_b32 {s(sC)}, 0x3e0293ee")
    p(f"s_mov_b32 {s(sC+1)}, 0x3e0293ee")
    p(f"s_mov_b32 {s(sPubMask)}, 0x000f000f")
    p(f"s_mov_b32 {s(sPubMask+1)}, 0x000f000f")
    for b in range(1, 4):
        p(f"s_add_u32 {s(sT0)}, {s(sW)}, {b}")
        p(f"s_and_b32 {s(sT0)}, {s(sT0)}, 3")
        p(f"s_lshl_b32 {s(sT0)}, {s(sT0)}, 10")
        p(f"s_add_u32 {s(sO+b-1)}, {s(sT0)}, {L_OI}")
    p(f"s_lshl_b32 {s(sT0)}, {s(sW)}, 10")
    p(f"s_add_u32 {s(sO+3)}, {s(sT0)}, {L_OI}")
    p(f"s_lshl_b32 {s(sT0)}, {s(sH)}, 13")
    p(f"s_lshl_b32 {s(sW2k)}, {s(sW)}, 11")
    p(f"s_add_u32 {s(sT0)}, {s(sT0)}, {s(sW2k)}")
    p(f"s_add_u32 {s(sKX)}, {s(sT0)}, {WS_KX}")
    p(f"s_add_u32 {s(sVX)}, {s(sT0)}, {WS_VX}")
    p(f"s_add_u32 {s(sM0K)}, {s(sW2k)}, {L_BUF}")
    p(f"s_add_u32 {s(sM0V)}, {s(sW2k)}, {L_BUF + 8192}")
    p(f"s_lshl_b32 {s(sT0)}, {s(sH)}, 11")
    p(f"s_lshl_b32 {s(sT1)}, {s(sW)}, 9")
    p(f"s_add_u32 {s(sKM)}, {s(sT0)}, {s(sT1)}")
    p(f"s_lshl_b32 {s(sVM)}, {s(sKM)}, 1")
    p(f"s_add_u32 {s(sVM)}, {s(sVM)}, {WS_VM}")
    p(f"s_add_u32 {s(sKM)}, {s(sKM)}, {WS_KM}")
    p(f"s_mov_b32 {s(sMpub)}, {WS_M + 8192}")
    p(f"s_mov_b32 {s(sMrst)}, {WS_M + 2*8192}")
    p(f"s_mov_b32 {s(sStep)}, 0")
    p(f"s_mov_b32 {s(sTag)}, 0")
    p("s_mov_b32 s58, 0"); p("s_mov_b32 s59, 0")

    dma_list = [
        [f"s_mov_b32 m0, {s(sM0K)}", f"buffer_load_dwordx4 {v(vL16)}, {SRD}, {s(sKX)} offen{DS} lds"],
        [f"buffer_load_dwordx4 {v(vL16)}, {SRD}, {s(sKX)} offen offset:1024{DS} lds", f"s_add_u32 {s(sKX)}, {s(sKX)}, {32*8192}", f"s_xor_b32 {s(sM0K)}, {s(sM0K)}, 16384"],
        [f"s_mov_b32 m0, {s(sM0V)}", f"buffer_load_dwordx4 {v(vL16)}, {SRD}, {s(sVX)} offen{DS} lds"],
        [f"buffer_load_dwordx4 {v(vL16)}, {SRD}, {s(sVX)} offen offset:1024{DS} lds", f"s_add_u32 {s(sVX)}, {s(sVX)}, {32*8192}", f"s_xor_b32 {s(sM0V)}, {s(sM0V)}, 16384"],
    ]
    def set_srd(base, nbytes):
        p(f"s_mov_b32 {s(sSRDW)}, {s(base)}")
        p(f"s_mov_b32 {s(sSRDW+1)}, {s(base+1)}")
        p(f"s_mov_b32 {s(sSRDW+2)}, {nbytes}")
        p(f"s_mov_b32 {s(sSRDW+3)}, 0x00020000")
    SW = s(sSRDW, 4)
    WN = 512 * 32 * 128 * 2
    for i, base in enumerate((60, 62, 64, 66)):
        p(f"s_mov_b32 {s(80+4*i)}, {s(base)}")
        p(f"s_and_b32 {s(81+4*i)}, {s(base+1)}, 0xffff")
        p(f"s_mov_b32 {s(82+4*i)}, {WN}")
        p(f"s_mov_b32 {s(83+4*i)}, 0x00020000")
    SQ, SK, SV, SO = (s(80+4*i, 4) for i in range(4))
    p("v_lshrrev_b32 v16, 2, v13"); p("v_lshlrev_b32 v16, 13, v16")
    p("v_and_b32 v17, 3, v13"); p("v_lshl_add_u32 v16, v17, 4, v16")
    p(f"s_lshl_b32 {s(sT0)}, {s(sH)}, 8"); p(f"s_lshl_b32 {s(sT1)}, {s(sW)}, 6"); p(f"s_add_u32 {s(sT0)}, {s(sT0)}, {s(sT1)}")
    p(f"v_add_u32 v16, {s(sT0)}, v16")
    p("v_lshlrev_b32 v17, 10, v15"); p("v_lshl_add_u32 v17, v14, 4, v17")
    p(f"s_lshl_b32 {s(sT0)}, {s(sH)}, 17"); p(f"s_lshl_b32 {s(sT1)}, {s(sW)}, 8"); p(f"s_add_u32 {s(sT0)}, {s(sT0)}, {s(sT1)}")
    p(f"v_add_u32 v17, {s(sT0)}, v17")
    p(f"s_lshl_b32 {s(sT2)}, {s(sW)}, 13"); p(f"s_add_u32 {s(sT2)}, {s(sT2)}, {L_BUF}")
    p(f"v_add_u32 v18, {s(sT2)}, {v(vL16)}")
    p(f"v_add_u32 v19, {s(sWL)}, {v(vL16)}")
    p("v_and_b32 v20, 1, v15"); p("v_lshlrev_b32 v20, 2, v20"); p("v_lshrrev_b32 v21, 1, v15"); p("v_add_u32 v20, v20, v21")
    p("v_lshlrev_b32 v20, 6, v20"); p("v_lshl_add_u32 v20, v14, 2, v20"); p(f"v_add_u32 v20, {s(sT2)}, v20")
    p("v_lshlrev_b32 v21, 10, v15"); p("v_lshl_add_u32 v21, v14, 2, v21"); p(f"v_add_u32 v21, {s(sT2)}, v21")
    p(f"s_and_b32 {s(sT0)}, {s(sH)}, 1"); p(f"s_lshl_b32 {s(sT0)}, {s(sT0)}, 7")
    p(f"s_xor_b32 {s(sT1)}, {s(sT0)}, 128")
    p(f"v_add_u32 v22, {s(sT1)}, v21"); p(f"v_add_u32 v21, {s(sT0)}, v21")
    p("s_mov_b32 s20, 0x05040100"); p("s_mov_b32 s21, 0x07060302")
    blocks = {"V0": ("v", 24), "V1": ("v", 56)}
    for i in range(5): blocks[f"R{i}"] = ("v", 96 + 32 * i)
    for i in range(8): blocks[f"A{i}"] = ("a", 32 * i)
    chunks = [("o", b) for b in range(4)] + [("v", c) for c in range(4)] + [(m, c) for c in (3, 2, 1, 0) for m in ("q", "k")]
    def dests(ch):
        k, c = ch
        if k == "o": return {f"A{4 + c}"}
        if k == "v": return {f"A{c}"}
        regs = [wres(t, 0 if k == "q" else 1) for t in range(4*c, 4*c + 4) if t >= 6]
        return {f"R{(r - 96) // 32}" for r in regs}
    buf_of = {}
    free = list(blocks)
    def issue(j):
        k, c = chunks[j]
        kind, base = blocks[buf_of[j]]
        for i in range(8):
            if k == "o":
                if i == 0:
                    p(f"s_add_u32 {s(sT1)}, {s(sW)}, {c}"); p(f"s_and_b32 {s(sT1)}, {s(sT1)}, 3"); p(f"s_lshl_b32 {s(sT1)}, {s(sT1)}, 15")
                p(f"s_add_u32 {s(sT0)}, {s(sT1)}, {4*i*1024}")
                p(f"buffer_load_dwordx4 {R(kind, base + 4*i, 4)}, v17, {SO}, {s(sT0)} offen")
            else:
                p(f"s_mov_b32 {s(sT0)}, {(128*c + 16*i) * 8192}")
                p(f"buffer_load_dwordx4 {R(kind, base + 4*i, 4)}, v16, {dict(q=SQ, k=SK, v=SV)[k]}, {s(sT0)} offen")
    filled = set()
    issued = [0]
    DEPTH = 6
    def try_issue(cur):
        while issued[0] < len(chunks) and issued[0] < cur + DEPTH:
            j = issued[0]
            banned = set(filled)
            for x in range(cur, j + 1): banned |= dests(chunks[x])
            banned |= {buf_of[x] for x in range(cur, j)}
            cand = [b for b in free if b not in banned]
            if not cand: break
            buf_of[j] = cand[0]; issue(j); issued[0] += 1
    TM = 88
    free.remove("V1")
    try_issue(0)
    if mega:
        for i in range(4): p(f"v_mov_b32 {v(88+i)}, -1")
        for sl in range(2):
            p(f"s_mov_b32 {s(sT0)}, {WS_P + sl*262144}")
            for k_ in range(2): p(f"buffer_store_dwordx4 v[88:91], {v(vH1l)}, {SRD}, {s(sT0)} offen offset:{k_*1024} sc1")
        p(f"s_mov_b64 exec, {s(sPubMask,2)}")
        for sl in range(3):
            p(f"s_mov_b32 {s(sT0)}, {WS_M + sl*8192}")
            p(f"buffer_store_dword v88, {v(vPub)}, {SRD}, {s(sT0)} offen sc1")
        p(f"s_mov_b64 exec, -1")
        sent_mark = p.vm_mark()
    set_srd(68, 8 * 512 * 2)
    for it in range(2):
        p(f"v_add_u32 v60, {256*it}, v11")
        p(f"v_and_b32 v61, 7, v60")
        p(f"v_lshrrev_b32 v62, 4, v60")
        p(f"v_bfe_u32 v63, v60, 3, 1")
        p(f"v_lshrrev_b32 v64, 3, v62")
        p(f"v_lshlrev_b32 v64, 7, v64")
        p(f"v_bfe_u32 v65, v62, 2, 1")
        p(f"v_lshl_add_u32 v64, v65, 6, v64")
        p(f"v_and_b32 v65, 3, v62")
        p(f"v_lshl_add_u32 v64, v65, 3, v64")
        p(f"v_add_u32 v64, v64, v63")
        p(f"v_lshlrev_b32 v64, 1, v64")
        p(f"v_lshl_add_u32 v64, v61, 10, v64")
        for m in range(4):
            p(f"buffer_load_ushort {v(68+m)}, v64, {SW}, 0 offen offset:{4*m}")
            p(f"buffer_load_ushort {v(72+m)}, v64, {SW}, 0 offen offset:{64+4*m}")
        for m in range(4):
            p(f"v_lshl_or_b32 {v(68+m)}, {v(72+m)}, 16, {v(68+m)}")
        p(f"v_lshlrev_b32 v60, 4, v60")
        p(f"ds_write_b128 v60, v[68:71] offset:{L_MEM}")

    free.append("V1")
    for cur, ch in enumerate(chunks):
        if cur == 3 and mega:
            saved_ = (list(p.vm), p.vm_total)
            p.vm_wait(sent_mark)
            p("s_barrier")
            p(f"s_cmp_lg_u32 {s(sW)}, 0"); p(f"s_cbranch_scc1 L_{name}_ri")
            p(f"v_mov_b32 v9, {D_RINIT*4}"); p("v_mov_b32 v10, 1"); p("s_mov_b64 exec, 1")
            p("global_atomic_add v9, v10, s[56:57]")
            p("s_mov_b64 exec, -1")
            p.label(f"L_{name}_ri")

            p.vm, p.vm_total = saved_
        try_issue(cur)
        assert cur in buf_of, (cur, ch)
        k, c = ch
        kind, base = blocks[buf_of[cur]]
        p("s_waitcnt lgkmcnt(0)")
        for i in range(8): p(f"ds_write_b128 v18, {R(kind, base + 4*i, 4)} offset:{i*1024}")
        del buf_of[cur]; buf_of[cur] = None
        buf_of = {x: y for x, y in buf_of.items() if y is not None}
        p("s_waitcnt lgkmcnt(0)")
        if k == "o":
            for q in range(4):
                for d in range(8):
                    row = 16 * (d // 4) + d % 4
                    p(f"ds_read_b32 {a(AWO + (c*4 + q)*8 + d)}, v{21 + q//2} offset:{row*256 + (q % 2)*64}")
        elif k == "v":
            for u in (2*c, 2*c + 1):
                for d in range(8):
                    for hl in range(2):
                        row = mem_col_scalar(2 * (2*u + hl) + d // 4, d) - 128 * c
                        p(f"ds_read_b32 {v(24*0 + TM + 2*(d % 4) + hl)}, v20 offset:{row*64}")
                    if d % 4 == 3:
                        for par in range(2):
                            for dd in range(d - 3, d + 1):
                                p(f"v_perm_b32 v23, {v(TM + 2*(dd % 4) + 1)}, {v(TM + 2*(dd % 4))}, {'s20' if par == 0 else 's21'}")
                                p(f"v_accvgpr_write_b32 {a(AWV + (u*2+par)*8 + dd)}, v23")
        else:
            m = 0 if k == "q" else 1
            for t in range(4*c, 4*c + 4):
                for d in range(8):
                    row = mem_col_scalar(2*t + d // 4, d) - 128 * c
                    dst = v(wres(t, m) + d) if t >= 6 else v(TM + d)
                    p(f"ds_read_b32 {dst}, v20 offset:{row*64}")
                if t < 6:
                    for hf in range(2): p(f"ds_write_b128 v19, {v(TM + 4*hf, 4)} offset:{wl_off(t, m) + hf*1024}")
        filled |= dests(ch)
    p("s_waitcnt vmcnt(0) lgkmcnt(0)")
    if not stamps: p.raw("    s_memrealtime s[98:99]")
    p(f"s_mov_b32 {s(sFirst)}, 1")
    def kv_poll(pp, lab):
        pp(f"s_mov_b32 {s(sSpin)}, {SPIN_MAX}")
        pp.label(lab)
        pp(f"v_lshlrev_b32 v9, 3, {v(vL16)}")
        pp(f"v_min_u32 v9, {15*128}, v9")
        pp(f"s_mov_b32 {s(sT2)}, {WS_FLAG + F_KV*128}")
        pp(f"buffer_load_dword v10, v9, {SRD}, {s(sT2)} offen sc1")
        pp("s_waitcnt vmcnt(0)")
        pp("v_cmp_gt_u32 vcc, 64, v10")
        pp("s_nop 4")
        pp(f"s_ff1_i32_b64 {s(sKVok)}, vcc")
        pp(f"s_min_u32 {s(sKVok)}, {s(sKVok)}, 16")
        pp(f"s_cmp_gt_u32 {s(sKVok)}, {s(sT1)}")
        pp(f"s_cbranch_scc1 {lab}_ok")
        pp("s_sleep 2")
        pp(f"s_sub_u32 {s(sSpin)}, {s(sSpin)}, 1")
        pp(f"s_cbranch_scc0 {lab}")
        pp(f"s_branch L_{name}_abort")
        pp.label(lab + "_ok")
    if not mega:
        p("s_barrier")
        for grp in dma_list:
            for x in grp: p(x)
        p("s_waitcnt vmcnt(0)")
        p.flush_state()
    if mega:
        p("s_barrier")
        p(f"s_mov_b32 {s(sSpin)}, {SPIN_MAX}")
        p.label(f"L_{name}_riw")
        p(f"v_mov_b32 v20, {D_RINIT*4}")
        p("global_load_dword v21, v20, s[56:57] sc1")
        p("s_waitcnt vmcnt(0)")
        p("v_readfirstlane_b32 s44, v21")
        p("s_cmp_ge_u32 s44, 32"); p(f"s_cbranch_scc1 L_{name}_riok")
        p(f"s_sub_u32 {s(sSpin)}, {s(sSpin)}, 1"); p(f"s_cbranch_scc0 L_{name}_riw"); p(f"s_branch L_{name}_abort")
        p.label(f"L_{name}_riok")
        p(f"s_mov_b32 {s(sSpin)}, {SPIN_MAX}")
        p.label(f"L_{name}_mw")
        p(f"v_mov_b32 v20, {D_MOD*4}")
        p("global_load_dword v21, v20, s[56:57] sc1")
        p("s_waitcnt vmcnt(0)")
        p("v_readfirstlane_b32 s44, v21")
        p("s_cmp_ge_u32 s44, 48"); p(f"s_cbranch_scc1 L_{name}_mok")
        p(f"s_sub_u32 {s(sSpin)}, {s(sSpin)}, 1"); p(f"s_cbranch_scc0 L_{name}_mw"); p(f"s_branch L_{name}_abort")
        p.label(f"L_{name}_mok")
        p(f"s_mov_b32 {s(sT1)}, 0")
        kv_poll(p, f"L_{name}_kv0")
        for grp in dma_list:
            for x in grp: p(x)
        p("s_waitcnt vmcnt(0)")
        p.flush_state()
    p(f"s_mov_b32 {s(sSpin)}, {SPIN_MAX}")
    p.label(f"L_{name}_mode")
    p("v_mov_b32 v20, 64")
    p("global_load_dword v22, v20, s[56:57] sc1")
    p("s_waitcnt vmcnt(0)")
    p("v_mov_b32 v20, 0")
    p("global_load_dword v21, v20, s[56:57] sc1")
    p("s_waitcnt vmcnt(0)")
    p("v_readfirstlane_b32 s44, v21")
    p("v_readfirstlane_b32 s45, v22")
    p(f"s_cmp_ge_u32 s44, {NHEAD_THR}")
    p(f"s_cbranch_scc1 L_{name}f_preA")
    p("s_cmp_ge_u32 s45, 256")
    p(f"s_cbranch_scc1 L_{name}s_preA")
    p(f"s_sub_u32 {s(sSpin)}, {s(sSpin)}, 1")
    p(f"s_cbranch_scc0 L_{name}_mode")
    p(f"s_branch L_{name}_abort")
    p.flush_state()

    def emit_loop(N, st_mod):
        g = Region(p, list(range(9, 96)))
        def st(k):
            if stamps: g.raw(f"    s_memtime s[{70+2*k}:{71+2*k}]")
        SMF = "v_smfmac_f32_16x16x64_bf16"
        MF32 = "v_mfma_f32_16x16x32_bf16"
        MF16 = "v_mfma_f32_16x16x16_bf16"
        KVS = "" if opt.get("kvplain") else " sc1"
        def dly(n):
            while n > 0:
                k = min(n, 4); g(f"s_nop {4*k-1}"); n -= k
        t0, t1 = g.vr("t0"), g.vr("t1")
        def chk8(Y):
            g(f"v_max3_u32 {t0}, {Y[0]}, {Y[1]}, {Y[2]}")
            g(f"v_max3_u32 {t1}, {Y[3]}, {Y[4]}, {Y[5]}")
            g(f"v_max3_u32 {t0}, {t0}, {Y[6]}, {Y[7]}")
            g(f"v_max_u32 {t0}, {t0}, {t1}")
            g(f"v_cmp_eq_u32 vcc, -1, {t0}")
        def chk8t(Y):
            c4 = g.vr("c4", 4, 1)
            for i in range(4): g(f"v_bitop3_b32 {c4[i]}, {Y[2*i]}, {Y[2*i+1]}, {s(sTag)} bitop3:0x7e")
            g(f"v_or3_b32 {c4[0]}, {c4[0]}, {c4[1]}, {c4[2]}")
            g(f"v_bitop3_b32 {c4[0]}, {c4[0]}, {c4[3]}, 1 bitop3:0xa8")
            g(f"v_cmp_ne_u32 vcc, 0, {c4[0]}")
        g.label(f"L_{N}_top")
        def resets():
            NEG = g.vr("NEG", 1)
            g(f"s_mov_b64 exec, {s(sPubMask,2)}")
            g(f"v_mov_b32 {NEG}, -1")
            g(f"buffer_store_dword {NEG}, {v(vPub)}, {SRD}, {s(sMrst)} offen{st_mod}")
            g(f"s_mov_b64 exec, -1")
        g.label(f"L_{N}_preA")
        g.flush_state()
        wl = g.vr("wl")
        g(f"v_add_u32 {wl}, {s(sWL)}, {v(vL16)}")
        WP = {}
        pre = [(0,0),(0,1),(1,0),(1,1),(2,0),(2,1),(3,0)]
        def prel(lst):
            for f_ in lst:
                WP[f_] = g.vr(f"W{f_[0]}{f_[1]}", 8)
                for hf in range(2):
                    g(f"ds_read_b128 {WP[f_][4*hf:4*hf+4]}, {wl} offset:{wl_off(*f_) + hf*1024}")
        nA = opt.get("preA", 3)
        SEL = g.vr("SEL", 4)
        g(f"ds_read_b128 {SEL}, {v(vL16)} offset:{L_SEL}")
        prel(pre[:nA])
        g(f"s_cmp_eq_u32 {s(sFirst)}, 1")
        g(f"s_cbranch_scc1 L_{N}_pre")
        RD = g.vr("RD", 4)
        d1depth = opt.get("h1depth", 1)
        XS = [g.vr(f"X{i}", 8) for i in range(d1depth)]
        def ld_p(X):
            g(f"buffer_load_dwordx4 {X[0:4]}, {v(vH1l)}, {SRD}, {s(sPld)} offen sc1")
            g(f"buffer_load_dwordx4 {X[4:8]}, {v(vH1l)}, {SRD}, {s(sPld+1)} offen sc1")
        def poll(XS, ld, tag, stag, cnt, use, chk8):
            D = len(XS)
            for i, X in enumerate(XS):
                ld(X)
                if i + 1 < D: dly(stag)
            g.flush_state()
            g.label(f"L_{N}_{tag}p")
            for i, X in enumerate(XS):
                g(f"s_waitcnt vmcnt({2*(D-1)})")
                chk8(X)
                g(f"s_cbranch_vccz L_{N}_{tag}u{i}")
                ld(X)
            g(cnt)
            g(f"s_sub_u32 {s(sSpin)}, {s(sSpin)}, 1")
            g(f"s_cbranch_scc0 L_{N}_{tag}p")
            g(f"s_branch L_{name}_abort")
            for i, X in reversed(list(enumerate(XS))):
                g.label(f"L_{N}_{tag}u{i}")
                g.flush_state()
                use(X)
                if i > 0: g(f"s_branch L_{N}_{tag}ok")
            g.label(f"L_{N}_{tag}ok")
            g.flush_state()
        dly(opt.get("d1", 4))
        g(f"s_mov_b32 {s(sSpin)}, {SPIN_MAX}")
        g("s_waitcnt lgkmcnt(0)")
        def use1(X):
            g(f"{MF32} {RD}, {SEL}, {X[0:4]}, 0")
            g(f"{MF32} {RD}, {SEL}, {X[4:8]}, {RD}")
        poll(XS, ld_p, "h1", opt.get("s1", 10), "s_add_u32 s58, s58, 0x10000", use1, chk8t)
        g("s_nop 3")
        st(12)
        g(f"s_add_u32 {s(sMpoll)}, {s(sMpub)}, {s(sW2k)}")
        g(f"s_xor_b32 {s(sTag)}, {s(sTag)}, 1")
        g(f"s_add_u32 {s(sStep)}, {s(sStep)}, 1")
        for ror in (4, 8):
            g(f"v_add_f32_dpp {RD[0]}, {RD[0]}, {RD[0]} row_ror:{ror} row_mask:0xf bank_mask:0xf")
            g(f"v_add_f32_dpp {RD[1]}, {RD[1]}, {RD[1]} row_ror:{ror} row_mask:0xf bank_mask:0xf")
        g(f"v_cvt_pk_bf16_f32 {RD[0]}, {RD[0]}, {RD[1]}")
        g(f"s_mov_b64 exec, {s(sPubMask,2)}")
        g(f"buffer_store_dword {RD[0]}, {v(vPub)}, {SRD}, {s(sMpub)} offen{st_mod}")
        g(f"s_mov_b64 exec, -1")
        st(13)
        g(f"s_mov_b32 {s(sMpub)}, {s(sMrst)}")
        g(f"s_add_u32 {s(sMrst)}, {s(sMrst)}, 8192")
        g(f"s_cmp_eq_u32 {s(sMrst)}, {WS_M + 3*8192}")
        g(f"s_cselect_b32 {s(sMrst)}, {WS_M}, {s(sMrst)}")
        g(f"s_add_u32 {s(sKM)}, {s(sKM)}, {32*2048}")
        g(f"s_add_u32 {s(sVM)}, {s(sVM)}, {32*4096}")
        g(f"v_xor_b32 {v(vBuf)}, 16384, {v(vBuf)}")
        g.label(f"L_{N}_pre")
        g.flush_state()
        prel(pre[nA:])
        accQ, accK = g.vr("accQ", 4), g.vr("accK", 4)
        g(f"ds_read_b128 {accQ}, {v(vL16)} offset:{L_ZERO}")
        g(f"ds_read_b128 {accK}, {v(vL16)} offset:{L_ZERO}")
        a2 = g.vr("a2")
        g(f"v_and_b32 {a2}, 1, {v(vIdx)}")
        g(f"v_lshl_add_u32 {a2}, {a2}, 9, {v(vA)}")
        ma = g.vr("ma")
        g(f"v_add_u32 {ma}, {s(sW2k)}, {v(vL16)}")
        g(f"s_cmp_eq_u32 {s(sFirst)}, 1")
        g(f"s_mov_b32 {s(sFirst)}, 0")
        g(f"s_cbranch_scc1 L_{N}_e0")
        d2depth = opt.get("h2depth", 1)
        YS = [g.vr(f"Y{i}", 8) for i in range(d2depth)]
        def ld_m(Y):
            g(f"buffer_load_dwordx4 {Y[0:4]}, {v(vL16)}, {SRD}, {s(sMpoll)} offen sc1")
            g(f"buffer_load_dwordx4 {Y[4:8]}, {v(vL16)}, {SRD}, {s(sMpoll)} offen offset:1024 sc1")
        dly(opt.get("d2", 0))
        g(f"s_mov_b32 {s(sSpin)}, {SPIN_MAX}")
        def use2(Y):
            g(f"ds_write_b128 {ma}, {Y[0:4]} offset:{L_MEM}")
            g(f"ds_write_b128 {ma}, {Y[4:8]} offset:{L_MEM+1024}")
        if d1depth > 1:
            g("s_waitcnt vmcnt(1)")
            g.keep(*XS)
        poll(YS, ld_m, "h2", opt.get("s2", 10), "s_add_u32 s59, s59, 1", use2, chk8)
        if d2depth > 1:
            g("s_waitcnt vmcnt(0)")
            g.keep(*YS)
        st(14)
        resets()
        g.label(f"L_{N}_e0")
        if mega:
            g(f"s_add_u32 {s(sT1)}, {s(sStep)}, 1"); g(f"s_lshr_b32 {s(sT1)}, {s(sT1)}, 2"); g(f"s_min_u32 {s(sT1)}, {s(sT1)}, 15")
            g(f"s_cmp_gt_u32 {s(sKVok)}, {s(sT1)}")
            g(f"s_cbranch_scc1 L_{N}_kvok")
            g.raw("KVPOLL " + N)
            g.label(f"L_{N}_kvok")
        g("s_waitcnt lgkmcnt(0)")
        st(15)
        g.raw("DUMP")
        g("s_barrier")
        g.flush_state()
        st(0)
        if stamps: g.raw("    s_memrealtime s[72:73]")
        AF = {}
        def aread(t):
            r = g.vr(f"A{t}", 4)
            g(f"ds_read_b128 {r}, {v(vA)} offset:{L_MEM + t*512}")
            return r
        AV = {}
        def avread(u):
            AV[u] = g.vr(f"AV{u}", 4)
            g(f"ds_read_b128 {AV[u]}, {a2} offset:{L_MEM + u*1024}")
        seq = pre + [(6,0),(6,1),(7,0),(7,1),(3,1)] + [(t, m) for t in range(8, 16) for m in range(2)] + [(4,0),(5,0),(4,1),(5,1)]
        aorder = [0, 1, 2, 3, 6, 7] + list(range(8, 16)) + [4, 5]
        streams = [(3,1),(4,0),(5,0),(4,1),(5,1)]
        LA = 4
        for t in aorder[:LA]: AF[t] = aread(t)
        nextA = [LA]
        WSr = {}
        extra = {}
        def after(pos, fn): extra.setdefault(pos, []).append(fn)
        def nexta():
            if nextA[0] < len(aorder):
                t = aorder[nextA[0]]; AF[t] = aread(t); nextA[0] += 1
        for ps in [1, 3, 5, 8, 10, 13, 15, 17, 19, 21, 23, 25]: after(ps, nexta)
        def stream_half(f_, hf):
            if hf == 0: WSr[f_] = g.vr(f"S{f_[0]}{f_[1]}", 8)
            g(f"ds_read_b128 {WSr[f_][4*hf:4*hf+4]}, {wl} offset:{wl_off(*f_) + hf*1024}")
        spos = opt.get("spos", [(2, 4), (12, 14), (16, 18), (20, 22), (24, 26)])
        for f_, (pa, pb) in zip(streams, spos):
            after(pa, lambda f_=f_: stream_half(f_, 0)); after(pb, lambda f_=f_: stream_half(f_, 1))
        if not opt.get("nodma"):
            for k_, grp in enumerate(dma_list): after(opt.get("dmapos", [0, 6, 7, 9])[k_], lambda grp=grp: [g(x) for x in grp])
        if mega:
            def progress():
                pg = g.vr("pg", 2, 1)
                g(f"s_or_b32 {s(sT2)}, {s(sH)}, {s(sW)}")
                g(f"s_cmp_lg_u32 {s(sT2)}, 0")
                g(f"s_cbranch_scc1 L_{N}_nopg")
                g(f"s_mov_b64 exec, 1")
                g(f"s_mov_b32 {s(sT2)}, {WS_FLAG + F_REC*128}")
                g(f"v_mov_b32 {pg[0]}, 0"); g(f"v_mov_b32 {pg[1]}, {s(sStep)}")
                g(f"buffer_store_dword {pg[1]}, {pg[0]}, {SRD}, {s(sT2)} offen sc1")
                g(f"s_mov_b64 exec, -1")
                g.label(f"L_{N}_nopg")
                g("s_nop 0")
            after(11, progress)
        accV = [g.vr("accV0", 4), g.vr("accV1", 4)]
        after(27, lambda: g(f"ds_read_b128 {accV[0]}, {v(vL16)} offset:{L_ZERO}"))
        after(28, lambda: g(f"ds_read_b128 {accV[1]}, {v(vL16)} offset:{L_ZERO}"))
        after(28, lambda: avread(0)); after(29, lambda: avread(1)); after(30, lambda: avread(2)); after(31, lambda: avread(3))
        for i, f_ in enumerate(seq):
            t, m = f_
            w_ = str(WP[f_]) if f_ in WP else (str(WSr[f_]) if f_ in WSr else v(wres(t, m), 8))
            g(f"{SMF} {accQ if m == 0 else accK}, {AF[t]}, {w_}, {v(vIdx)}")
            for fn in extra.get(i, []): fn()
        st(2)
        KX = {}
        def kxread(T, t):
            KX[(T, t)] = g.vr(f"KX{T}{t}", 4)
            g(f"ds_read_b128 {KX[(T,t)]}, {v(vBuf)} offset:{(T*4 + t)*1024}")
        vseq = [(u, par) for u in range(8) for par in range(2)]
        vpos = [0]
        def vmf(n=1):
            for _ in range(n):
                u, par = vseq[vpos[0]]; vpos[0] += 1
                g(f"{SMF} {accV[par]}, {AV[u]}, {a(AWV + (u*2+par)*8, 8)}, {v(vIdx)}")
        qp, kp = g.vr("qp", 2), g.vr("kp", 2)
        QT = [g.vr(f"QT{t}", 4) for t in range(4)]
        KM = [g.vr(f"KM{t}", 4) for t in range(4)]
        def qtread(t):
            for u in range(2): g(f"ds_read_b64_tr_b16 {QT[t][2*u:2*u+2]}, {v(vQr)} offset:{(32*t + 16*u)*8}")
        def kmread(t):
            for u in range(2): g(f"ds_read_b64_tr_b16 {KM[t][2*u:2*u+2]}, {v(vQr)} offset:{L_KI - L_QI + (32*t + 16*u)*8}")
        def qt(t, u): g(f"ds_read_b64_tr_b16 {QT[t][2*u:2*u+2]}, {v(vQr)} offset:{(32*t + 16*u)*8}")
        def km(t, u): g(f"ds_read_b64_tr_b16 {KM[t][2*u:2*u+2]}, {v(vQr)} offset:{L_KI - L_QI + (32*t + 16*u)*8}")
        S1, S2, SM = g.vr("S1", 4), g.vr("S2", 4), g.vr("SM", 4)
        def mm(D, A_, B_, first): g(f"{MF32} {D}, {A_}, {B_}, {'0' if first else D}")
        def s1(t): mm(S1, KX[(0, t)], QT[t], t == 0)
        def s2(t): mm(S2, KX[(1, t)], QT[t], t == 0)
        def sm(t): mm(SM, KM[t], QT[t], t == 0)
        g(f"v_pk_mul_f32 {accQ[0:2]}, {accQ[0:2]}, {s(sC,2)}"); g(f"v_pk_mul_f32 {accQ[2:4]}, {accQ[2:4]}, {s(sC,2)}")
        vmf(1)
        g(f"v_cvt_pk_bf16_f32 {qp[0]}, {accQ[0]}, {accQ[1]}"); g(f"v_cvt_pk_bf16_f32 {qp[1]}, {accQ[2]}, {accQ[3]}")
        g(f"ds_write_b64 {v(vQw)}, {qp}")
        vmf(1)
        g(f"v_cvt_pk_bf16_f32 {kp[0]}, {accK[0]}, {accK[1]}"); g(f"v_cvt_pk_bf16_f32 {kp[1]}, {accK[2]}, {accK[3]}")
        g(f"ds_write_b64 {v(vQw)}, {kp} offset:{L_KI - L_QI}")
        vmf(1); kxread(0, 0)
        vmf(1); kxread(1, 0)
        vmf(1); avread(4)
        vmf(1); avread(5)
        g("s_waitcnt lgkmcnt(4)")
        st(3)
        g("s_barrier")
        st(4)
        h8 = g.vr("h8"); vxa = g.vr("vxa")
        qt(0, 0); qt(0, 1)
        vmf(1); qt(1, 0)
        vmf(1); qt(1, 1)
        vmf(1); avread(6)
        vmf(1); kxread(0, 1)
        vmf(1); kxread(1, 1)
        vmf(1); avread(7)
        s1(0); qt(2, 0); qt(2, 1)
        s2(0); kxread(0, 2); kxread(1, 2)
        vmf(1); qt(3, 0)
        s1(1); qt(3, 1); kxread(0, 3)
        s2(1); kxread(1, 3); km(0, 0)
        vmf(1); km(0, 1)
        s1(2); km(1, 0); km(1, 1)
        s2(2); km(2, 0); km(2, 1)
        vmf(1); km(3, 0)
        s1(3); km(3, 1); g(f"v_lshrrev_b32 {h8}, 1, {v(vL16)}")
        s2(3); g(f"buffer_store_dwordx2 {kp}, {h8}, {SRD}, {s(sKM)} offen{KVS}") if not opt.get("nokvst") else None
        vmf(1); g(f"v_add_u32 {vxa}, {s(sW2k)}, {v(vBuf)}")
        assert vpos[0] == 16, vpos
        VXF = [g.vr("VX0", 4), g.vr("VX1", 4)]
        ONE, HALF = g.vr("ONE", 4), g.vr("HALF", 4)
        WACC = [g.vr(f"WA{q}", 4) for q in range(4)]
        VE = g.vr("VE", 4)
        m_, u_ = g.vr("m", 2), g.vr("u")
        sm(0)
        g(f"ds_read_b128 {VXF[0]}, {vxa} offset:8192")
        g(f"v_max3_f32 {m_[0]}, {S1[0]}, {S1[1]}, {S1[2]}")
        sm(1)
        g(f"ds_read_b128 {VXF[1]}, {vxa} offset:{8192+1024}")
        g(f"v_max3_f32 {u_}, {S1[3]}, {S2[0]}, {S2[1]}")
        sm(2)
        g(f"ds_read_b128 {ONE}, {v(vL16)} offset:{L_ONE}")
        g(f"v_max3_f32 {m_[0]}, {m_[0]}, {S2[2]}, {S2[3]}")
        sm(3)
        g(f"ds_read_b128 {HALF}, {v(vL16)} offset:{L_HALF}")
        g(f"v_max_f32 {m_[0]}, {m_[0]}, {u_}")
        st(5)
        g(f"v_cvt_pk_bf16_f32 {VE[0]}, {accV[0][0]}, {accV[0][1]}"); g(f"v_cvt_pk_bf16_f32 {VE[1]}, {accV[0][2]}, {accV[0][3]}")
        g(f"v_cvt_pk_bf16_f32 {VE[2]}, {accV[1][0]}, {accV[1][1]}"); g(f"v_cvt_pk_bf16_f32 {VE[3]}, {accV[1][2]}, {accV[1][3]}")
        g(f"v_max3_f32 {u_}, {SM[0]}, {SM[1]}, {SM[2]}")
        g(f"v_max3_f32 {m_[0]}, {m_[0]}, {u_}, {SM[3]}")
        g(f"v_mov_b32 {u_}, {m_[0]}")
        g(f"ds_read_b128 {WACC[0]}, {v(vL16)} offset:{L_ZERO}")
        g(f"v_permlane32_swap_b32 {m_[0]}, {u_}")
        g(f"v_max_f32 {m_[0]}, {m_[0]}, {u_}")
        g(f"v_mov_b32 {u_}, {m_[0]}")
        g(f"ds_read_b128 {WACC[1]}, {v(vL16)} offset:{L_ZERO}")
        g(f"v_permlane16_swap_b32 {m_[0]}, {u_}")
        g(f"v_max_f32 {m_[0]}, {m_[0]}, {u_}")
        st(6)
        P12, PM = g.vr("P12", 4), g.vr("PM", 2)
        def psub(S):
            for i in (0, 2): g(f"v_pk_add_f32 {S[i:i+2]}, {S[i:i+2]}, {m_} op_sel_hi:[1,0] neg_lo:[0,1] neg_hi:[0,1]")
        psub(S1); psub(S2)
        for i in range(4): g(f"v_exp_f32 {S1[i]}, {S1[i]}")
        psub(SM)
        for i in range(4): g(f"v_exp_f32 {S2[i]}, {S2[i]}")
        g(f"v_cvt_pk_bf16_f32 {P12[0]}, {S1[0]}, {S1[1]}")
        g(f"v_cvt_pk_bf16_f32 {P12[1]}, {S1[2]}, {S1[3]}")
        g(f"v_cvt_pk_bf16_f32 {P12[2]}, {S2[0]}, {S2[1]}")
        g(f"v_cvt_pk_bf16_f32 {P12[3]}, {S2[2]}, {S2[3]}")
        O0, O1, L = g.vr("O0", 4), g.vr("O1", 4), g.vr("L", 4)
        st(7)
        g(f"v_exp_f32 {SM[0]}, {SM[0]}")
        mm(L, ONE, P12, True)
        g(f"buffer_store_dwordx4 {VE}, {v(vL16)}, {SRD}, {s(sVM)} offen{KVS}") if not opt.get("nokvst") else None
        g(f"s_cmp_eq_u32 {s(sStep)}, {nsteps-1}")
        g(f"s_cbranch_scc1 L_{name}_done")
        g(f"v_exp_f32 {SM[1]}, {SM[1]}")
        mm(O0, VXF[0], P12, True)
        g(f"v_exp_f32 {SM[2]}, {SM[2]}")
        mm(O1, VXF[1], P12, True)
        g(f"v_exp_f32 {SM[3]}, {SM[3]}")
        g(f"v_cvt_pk_bf16_f32 {PM[0]}, {SM[0]}, {SM[1]}")
        g(f"v_cvt_pk_bf16_f32 {PM[1]}, {SM[2]}, {SM[3]}")
        oa = g.vr("oa", 4, 1)
        g(f"{MF16} {L}, {HALF[0:2]}, {PM}, {L}")
        g(f"ds_read_b128 {WACC[2]}, {v(vL16)} offset:{L_ZERO}")
        g(f"v_add_u32 {oa[3]}, {s(sO+3)}, {v(vL16)}")
        g(f"{MF16} {O0}, {VE[0:2]}, {PM}, {O0}")
        g(f"ds_read_b128 {WACC[3]}, {v(vL16)} offset:{L_ZERO}")
        g(f"v_add_u32 {oa[0]}, {s(sO)}, {v(vL16)}")
        g(f"{MF16} {O1}, {VE[2:4]}, {PM}, {O1}")
        g(f"v_add_u32 {oa[1]}, {s(sO+1)}, {v(vL16)}")
        g(f"v_add_u32 {oa[2]}, {s(sO+2)}, {v(vL16)}")
        st(8)
        rl = g.vr("rl", 2)
        g(f"v_rcp_f32 {rl[0]}, {L[0]}")
        for i in (0, 2): g(f"v_pk_mul_f32 {O0[i:i+2]}, {O0[i:i+2]}, {rl} op_sel_hi:[1,0]")
        for i in (0, 2): g(f"v_pk_mul_f32 {O1[i:i+2]}, {O1[i:i+2]}, {rl} op_sel_hi:[1,0]")
        OA = [g.vr(f"OA{b}", 4) for b in range(4)]
        for j in range(4): g(f"v_cvt_pk_bf16_f32 {OA[0][j]}, {O0[j]}, {O1[j]}")
        g(f"ds_write_b128 {oa[3]}, {OA[0]}")
        def wo(b, q): g(f"{SMF} {WACC[q]}, {OA[b]}, {a(AWO + (b*4+q)*8, 8)}, {v(vIdx)}")
        st(9)
        wo(0, 0); wo(0, 1); wo(0, 2)
        g("s_waitcnt lgkmcnt(0)")
        g("s_barrier")
        st(10)
        for b in range(1, 4): g(f"ds_read_b128 {OA[b]}, {oa[b-1]}")
        wo(0, 3)
        PK = [g.vr("PK0", 4), g.vr("PK1", 4)]
        def cvt(q):
            g(f"v_cvt_pk_bf16_f32 {PK[q//2][2*(q%2)]}, {WACC[q][0]}, {WACC[q][1]}")
            g(f"v_cvt_pk_bf16_f32 {PK[q//2][2*(q%2)+1]}, {WACC[q][2]}, {WACC[q][3]}")
            for k_ in range(2): g(f"v_and_or_b32 {PK[q//2][2*(q%2)+k_]}, {PK[q//2][2*(q%2)+k_]}, -2, {s(sTag)}")
        def pst(q2): g(f"buffer_store_dwordx4 {PK[q2]}, {v(vH1s)}, {SRD}, {s(sPst+q2)} offen{st_mod}")
        def cvt1(q, k_): g(f"v_cvt_pk_bf16_f32 {PK[q//2][2*(q%2)+k_]}, {WACC[q][2*k_]}, {WACC[q][2*k_+1]}")
        def tag1(q, k_): g(f"v_and_or_b32 {PK[q//2][2*(q%2)+k_]}, {PK[q//2][2*(q%2)+k_]}, -2, {s(sTag)}")
        for b in range(1, 4): wo(b, 0)
        for b in range(1, 4): wo(b, 1)
        cvt1(0, 0)
        wo(1, 2); cvt1(0, 1); tag1(0, 0)
        wo(2, 2); tag1(0, 1); cvt1(1, 0)
        wo(3, 2); cvt1(1, 1); tag1(1, 0)
        wo(1, 3); tag1(1, 1); pst(0)
        wo(2, 3); cvt1(2, 0); cvt1(2, 1)
        wo(3, 3); tag1(2, 0); tag1(2, 1)
        cvt1(3, 0); cvt1(3, 1); tag1(3, 0); tag1(3, 1); pst(1)
        st(11)
        g(f"s_branch L_{N}_top")
        items = []
        for it in g.items:
            if it[0] == "raw" and it[1].startswith("KVPOLL"):
                kva, kvb = g.vr("kva"), g.vr("kvb")
                lab = f"L_{N}_kvp"
                seqk = [("ins", f"s_mov_b32 {s(sSpin)}, {SPIN_MAX}"), ("label", lab),
                        ("ins", f"v_lshlrev_b32 {kva}, 3, {v(vL16)}"), ("ins", f"v_min_u32 {kva}, {15*128}, {kva}"),
                        ("ins", f"s_mov_b32 {s(sT2)}, {WS_FLAG + F_KV*128}"),
                        ("ins", f"buffer_load_dword {kvb}, {kva}, {SRD}, {s(sT2)} offen sc1"), ("ins", "s_waitcnt vmcnt(0)"),
                        ("ins", f"v_cmp_gt_u32 vcc, 64, {kvb}"), ("ins", "s_nop 4"),
                        ("ins", f"s_ff1_i32_b64 {s(sKVok)}, vcc"), ("ins", f"s_min_u32 {s(sKVok)}, {s(sKVok)}, 16"),
                        ("ins", f"s_cmp_gt_u32 {s(sKVok)}, {s(sT1)}"), ("ins", f"s_cbranch_scc1 L_{N}_kvok"), ("ins", "s_sleep 2"),
                        ("ins", f"s_sub_u32 {s(sSpin)}, {s(sSpin)}, 1"), ("ins", f"s_cbranch_scc0 {lab}"), ("ins", f"s_branch L_{name}_abort")]
                items.extend(seqk)
            elif it == ("raw", "DUMP"):
                if stamps:
                    items.append(("ins", "s_waitcnt lgkmcnt(0)"))
                    dv = g.vr("dv", 4); dz = g.vr("dz")
                    for x in [f"s_lshl_b32 {s(sT0)}, {s(sH)}, 2", f"s_add_u32 {s(sT0)}, {s(sT0)}, {s(sW)}", f"s_lshl_b32 {s(sT0)}, {s(sT0)}, 6",
                              f"s_add_u32 {s(sT0)}, {s(sT0)}, {s(sStep)}", f"s_lshl_b32 {s(sT0)}, {s(sT0)}, 6", f"s_add_u32 {s(sT0)}, {s(sT0)}, {WS_DBG + 4096}",
                              f"v_mov_b32 {dz}, 0", "s_mov_b64 exec, 1"]: items.append(("ins", x))
                    for k in range(4):
                        for i in range(4): items.append(("ins", f"v_mov_b32 {dv[i]}, s{70+2*(4*k+i)}"))
                        items.append(("ins", f"buffer_store_dwordx4 {dv}, {dz}, {SRD}, {s(sT0)} offen offset:{16*k}"))
                    items.append(("ins", "s_mov_b64 exec, -1")); items.append(("ins", "s_nop 4"))
            else: items.append(it)
        g.items = items
        g.finish(outer_labels=(f"L_{N}_top", f"L_{N}_pre", f"L_{N}_preA"), verbose=False)
    emit_loop(name + "f", "")
    emit_loop(name + "s", " sc1")

    p.label(f"L_{name}_abort")
    p(f"v_mov_b32 v20, 0xdead")
    p(f"v_mov_b32 v21, {s(sStep)}")
    p(f"v_mov_b32 v22, 0")
    p(f"global_store_dwordx2 v22, v[20:21], s[56:57] offset:{(D_ABORT if mega else 32)*4}")
    p.label(f"L_{name}_done")
    if mega:
        p("s_waitcnt vmcnt(0)")
        p("s_barrier")
        p(f"s_cmp_lg_u32 {s(sW)}, 0"); p(f"s_cbranch_scc1 L_{name}_fin")
        p("s_mov_b64 exec, 1")
        p(f"v_mov_b32 v20, 0"); p("v_mov_b32 v21, 1"); p(f"s_mov_b32 {s(sT2)}, {WS_FLAG + F_RECF*128}")
        p(f"buffer_atomic_add v21, v20, {SRD}, {s(sT2)} offen")
        p("s_mov_b64 exec, -1")
    p(f"s_cmp_lg_u32 {s(sW)}, 0")
    p(f"s_cbranch_scc1 L_{name}_fin")
    if not stamps:
        p.raw("    s_memrealtime s[100:101]")
        p("s_waitcnt lgkmcnt(0)")
        p("s_sub_u32 s98, s98, s96")
        p("s_sub_u32 s100, s100, s96")
        p("v_mov_b32 v22, s98")
        p("v_mov_b32 v23, s100")
    p("v_mov_b32 v20, s58")
    p("v_mov_b32 v21, s59")
    p(f"s_lshl_b32 {s(sT0)}, {s(sH)}, 6")
    p(f"s_add_u32 {s(sT0)}, {s(sT0)}, {WS_DBG}")
    p(f"v_mov_b32 v19, 0")
    p(f"s_mov_b64 exec, 1")
    p(f"buffer_store_dwordx4 v[20:23], v19, {SRD}, {s(sT0)} offen")
    p.label(f"L_{name}_fin")
    p("s_waitcnt vmcnt(0)")
    p.label(f"L_{name}_end")
    p("s_endpgm")
    return p

def kd(name, vgpr=512, accum=256, sgpr=102):
    return f""".section .rodata,"a"
.p2align 6
.amdhsa_kernel {name}
  .amdhsa_next_free_vgpr {vgpr}
  .amdhsa_next_free_sgpr {sgpr}
  .amdhsa_accum_offset {accum}
  .amdhsa_group_segment_fixed_size 0
  .amdhsa_kernarg_size 136
  .amdhsa_user_sgpr_count 2
  .amdhsa_user_sgpr_kernarg_segment_ptr 1
  .amdhsa_system_sgpr_workgroup_id_x 1
.end_amdhsa_kernel
.text
"""

def build(path, stamps=False, opt=None, nsteps=64):
    p = gen_rec("rec_kernel", stamps=stamps, opt=opt, nsteps=nsteps)
    hdr = f"; @launch kernel=rec_kernel grid=(256,1,1) block=(256,1,1) lds={LDS_BYTES}\n.amdgcn_target \"amdgcn-amd-amdhsa--gfx950\"\n.text\n.globl rec_kernel\n"
    open(path, "w").write(hdr + p.text() + kd("rec_kernel"))
    return p

if __name__ == "__main__":
    import sys, json
    if len(sys.argv) > 2:
        opt = json.loads(sys.argv[2]); tag = sys.argv[1]
        build(f"gen/{tag}_64.s", opt=opt); build(f"gen/{tag}_32.s", opt=opt, nsteps=32); build(f"gen/{tag}_st.s", opt=opt, stamps=True)
        sys.exit(0)
    build("rec_stamps.s", stamps=True)
    build("rec_32.s", nsteps=32)
    p = build("rec_test.s")
    print(p.stats, LDS_BYTES)
```

```python
from asmlib import *
from layout import WS_FLAG
D_XCC, D_TOTAL, D_FB, D_WORK, D_MOD, D_RINIT, D_ABORT = 0, 16, 17, 18, 19, 21, 22
F_LN1, F_KV, F_Q, F_ATT, F_WO, F_LN2, F_FFN1 = 0, 16, 32, 48, 64, 80, 96
F_REC, F_RECF = 112, 113
SDBG = "s[90:91]"
sWAVE = 92
SPIN = 400000
_uid = [0]
TRACE = False
SLEEP = 1

def _addr(p, where, idx, va, sa):
    if where == "dbg":
        p(f"v_mov_b32 {v(va)}, {idx*4}")
        return None
    if isinstance(idx, int): p(f"s_mov_b32 {s(sa)}, {WS_FLAG + idx*128}")
    else:
        base, sreg = idx
        p(f"s_lshl_b32 {s(sa)}, {sreg}, 7"); p(f"s_add_u32 {s(sa)}, {s(sa)}, {WS_FLAG + base*128}")
    p(f"v_mov_b32 {v(va)}, 0")

def wait_ge(p, where, idx, value, tmpv=(250, 251), tmps=(93, 94, 79)):
    _uid[0] += 1; u = _uid[0]
    va, vd = tmpv; sa, sb, so = tmps
    saved = (list(p.vm), p.vm_total, list(p.lgkm), set(p.smem_pending))
    p(f"s_cmp_lg_u32 {s(sWAVE)}, 0")
    p(f"s_cbranch_scc1 L_w{u}_done")
    _addr(p, where, idx, va, so)
    p(f"s_mov_b32 {s(sb)}, {SPIN}")
    p.label(f"L_w{u}_spin")
    if where == "dbg": p(f"global_load_dword {v(vd)}, {v(va)}, {SDBG} sc1")
    else: p(f"buffer_load_dword {v(vd)}, {v(va)}, s[4:7], {s(so)} offen sc1")
    p("s_waitcnt vmcnt(0)")
    p(f"v_readfirstlane_b32 {s(sa)}, {v(vd)}")
    p(f"s_cmp_ge_u32 {s(sa)}, {value}")
    p(f"s_cbranch_scc1 L_w{u}_done")
    p(f"s_sleep {SLEEP}")
    p(f"s_sub_u32 {s(sb)}, {s(sb)}, 1")
    p(f"s_cbranch_scc0 L_w{u}_spin")
    p.label(f"L_w{u}_done")
    p("s_barrier")
    if TRACE: p.raw("    s_memrealtime s[98:99]")
    p.vm, p.vm_total, p.lgkm, p.smem_pending = saved

def signal(p, where, idx, tmpv=(250, 251), tmps=(79,), drain=True, val=1):
    _uid[0] += 1; u = _uid[0]
    va, vd = tmpv; so = tmps[0]
    if drain:
        p("s_waitcnt vmcnt(0)")
        p("s_barrier")
    saved = (list(p.vm), p.vm_total)
    p(f"s_cmp_lg_u32 {s(sWAVE)}, 0")
    p(f"s_cbranch_scc1 L_s{u}_done")
    _addr(p, where, idx, va, so)
    p(f"v_mov_b32 {v(vd)}, {val}")
    p("s_mov_b64 exec, 1")
    if where == "dbg": p(f"global_atomic_add {v(va)}, {v(vd)}, {SDBG}")
    else: p(f"buffer_atomic_add {v(vd)}, {v(va)}, s[4:7], {s(so)} offen")
    p("s_mov_b64 exec, -1")
    p.label(f"L_s{u}_done")
    p.vm, p.vm_total = saved

A_ATT, A_WO, A_LN2, A_FFN1 = 116, 118, 120, 122

def wait_all(p, line, n, target_sreg, tmpv=(250, 251), tmps=(93, 94, 79)):
    _uid[0] += 1; u = _uid[0]
    va, vd = tmpv; sa, sb, so = tmps
    saved = (list(p.vm), p.vm_total, list(p.lgkm), set(p.smem_pending))
    p(f"s_cmp_lg_u32 {s(sWAVE)}, 0")
    p(f"s_cbranch_scc1 L_w{u}_done")
    p(f"s_mov_b32 {s(so)}, {WS_FLAG + line*128}")
    p(f"v_mbcnt_lo_u32_b32 {v(va)}, -1, 0"); p(f"v_mbcnt_hi_u32_b32 {v(va)}, -1, {v(va)}")
    p(f"v_min_u32 {v(va)}, {n-1}, {v(va)}"); p(f"v_lshlrev_b32 {v(va)}, 2, {v(va)}")
    p(f"s_mov_b32 {s(sb)}, {SPIN}")
    p.label(f"L_w{u}_spin")
    p(f"buffer_load_dword {v(vd)}, {v(va)}, s[4:7], {s(so)} offen sc1")
    p("s_waitcnt vmcnt(0)")
    p(f"v_cmp_gt_u32 vcc, {target_sreg}, {v(vd)}")
    p(f"s_cbranch_vccz L_w{u}_done")
    p(f"s_sleep {SLEEP}")
    p(f"s_sub_u32 {s(sb)}, {s(sb)}, 1")
    p(f"s_cbranch_scc0 L_w{u}_spin")
    p.label(f"L_w{u}_done")
    p("s_barrier")
    if TRACE: p.raw("    s_memrealtime s[98:99]")
    p.vm, p.vm_total, p.lgkm, p.smem_pending = saved

def signal_own(p, line, idx_sreg, val_sreg, tmpv=(250, 251), tmps=(79,)):
    _uid[0] += 1; u = _uid[0]
    va, vd = tmpv; so = tmps[0]
    p("s_waitcnt vmcnt(0)")
    p("s_barrier")
    saved = (list(p.vm), p.vm_total)
    p(f"s_cmp_lg_u32 {s(sWAVE)}, 0")
    p(f"s_cbranch_scc1 L_s{u}_done")
    p(f"s_lshl_b32 {s(so)}, {idx_sreg}, 2"); p(f"s_add_u32 {s(so)}, {s(so)}, {WS_FLAG + line*128}")
    p(f"v_mov_b32 {v(va)}, 0"); p(f"v_mov_b32 {v(vd)}, {val_sreg}")
    p("s_mov_b64 exec, 1")
    p(f"buffer_store_dword {v(vd)}, {v(va)}, s[4:7], {s(so)} offen sc1")
    p("s_mov_b64 exec, -1")
    p.label(f"L_s{u}_done")
    p.vm, p.vm_total = saved
```

```python
from asmlib import *
from layout import *
from sync import *
from small import srd
MF32 = "v_mfma_f32_16x16x32_bf16"; MF16 = "v_mfma_f32_16x16x16_bf16"
SC = " sc1"
SRD = "s[4:7]"

def body_mod(p, N):
    p(f"s_load_dwordx2 s[12:13], s[0:1], {KA['c']}")
    p(f"s_load_dwordx2 s[14:15], s[0:1], {KA['wmod']}")
    p("s_waitcnt lgkmcnt(0)")
    srd(p, 16, 12, 1024); srd(p, 20, 14, 512 * 3072 * 2)
    p("v_lshrrev_b32 v3, 3, v0"); p("v_and_b32 v4, 7, v0")
    p(f"v_mul_u32_u24 v5, {16*6144}, v3"); p("v_lshl_add_u32 v5, v4, 4, v5")
    p("s_lshl_b32 s3, s2, 7")
    for k in range(16):
        p(f"s_add_u32 s24, s3, {k*6144}")
        p(f"buffer_load_dwordx4 {v(32+4*k,4)}, v5, s[20:23], s24 offen")
    p("v_lshlrev_b32 v6, 5, v3")
    p("buffer_load_dwordx4 v[8:11], v6, s[16:19], 0 offen"); p("buffer_load_dwordx4 v[12:15], v6, s[16:19], 0 offen offset:16")
    for d in range(8):
        for hh in range(2):
            x = v(16 + 2*d + hh)
            if hh == 0: p(f"v_lshlrev_b32 {x}, 16, {v(8+d)}")
            else: p(f"v_and_b32 {x}, 0xffff0000, {v(8+d)}")
    for k in range(16):
        x = v(16 + k)
        p(f"v_mul_f32 v7, 0xbfb8aa3b, {x}"); p("v_exp_f32 v7, v7"); p("v_add_f32 v7, 1.0, v7"); p("v_rcp_f32 v7, v7"); p(f"v_mul_f32 {x}, {x}, v7")
    for k in range(0, 16, 2):
        p(f"v_cvt_pk_bf16_f32 v7, {v(16+k)}, {v(17+k)}")
        p(f"v_lshlrev_b32 {v(16+k)}, 16, v7"); p(f"v_and_b32 {v(17+k)}, 0xffff0000, v7")
    ACC = 100
    for e in range(8): p(f"v_mov_b32 {v(ACC+e)}, 0")
    for k in range(16):
        for d in range(4):
            w_ = v(32 + 4*k + d)
            p(f"v_lshlrev_b32 v6, 16, {w_}"); p(f"v_and_b32 v7, 0xffff0000, {w_}")
            p(f"v_fmac_f32 {v(ACC+2*d)}, {v(16+k)}, v6"); p(f"v_fmac_f32 {v(ACC+2*d+1)}, {v(16+k)}, v7")
    p("v_lshlrev_b32 v6, 8, v3"); p("v_lshl_add_u32 v6, v4, 5, v6")
    p(f"ds_write_b128 v6, {v(ACC,4)}"); p(f"ds_write_b128 v6, {v(ACC+4,4)} offset:16")
    p("s_waitcnt lgkmcnt(0)"); p("s_barrier")
    p(f"s_cmp_lg_u32 {s(sWAVE)}, 0"); p(f"s_cbranch_scc1 L_{N}_sig")
    p("v_lshlrev_b32 v10, 2, v0")
    for k in range(32): p(f"ds_read_b32 {v(32+k)}, v10 offset:{k*256}")
    for st_ in (16, 8, 4, 2, 1):
        for k in range(st_): p(f"v_add_f32 {v(32+k)}, {v(32+k)}, {v(32+k+st_)}")
    p("v_mov_b32 v16, v32")
    p("v_cvt_pk_bf16_f32 v16, v16, v16"); p("v_lshlrev_b32 v16, 16, v16")
    p("s_lshr_b32 s24, s2, 3")
    p("s_cmp_eq_u32 s24, 1"); p("s_cselect_b32 s25, 1, 0")
    p("s_cmp_eq_u32 s24, 4"); p("s_cselect_b32 s25, 1, s25")
    p("s_cmp_eq_u32 s25, 0"); p(f"s_cbranch_scc1 L_{N}_st")
    p("v_add_f32 v16, 1.0, v16"); p("v_cvt_pk_bf16_f32 v16, v16, v16"); p("v_lshlrev_b32 v16, 16, v16")
    p.label(f"L_{N}_st")
    p("s_lshl_b32 s3, s2, 8"); p(f"s_add_u32 s3, s3, {WS_MOD}")
    p(f"buffer_store_dword v16, v10, {SRD}, s3 offen{SC}")
    p.label(f"L_{N}_sig")
    p.flush_state()
    p("s_cmp_ge_u32 s2, 16"); p(f"s_cbranch_scc1 L_{N}_nz")
    p("v_lshlrev_b32 v1, 2, v0"); p("v_mov_b32 v2, 0")
    p("s_lshl_b32 s3, s2, 10"); p(f"s_add_u32 s3, s3, {WS_FLAG}")
    p(f"buffer_store_dword v2, v1, {SRD}, s3 offen{SC}")
    p.label(f"L_{N}_nz")
    signal(p, "dbg", D_MOD)

def xsum(p, r, t):
    p(f"v_mov_b32 {t}, {r}"); p(f"v_permlane32_swap_b32 {r}, {t}"); p(f"v_add_f32 {r}, {r}, {t}")
    p(f"v_mov_b32 {t}, {r}"); p(f"v_permlane16_swap_b32 {r}, {t}"); p(f"v_add_f32 {r}, {r}, {t}")

def body_ln(p, N, which):
    p(f"s_load_dwordx2 s[12:13], s[0:1], {KA['x']}")
    p("v_and_b32 v2, 63, v0")
    p("v_and_b32 v3, 15, v2"); p("v_lshrrev_b32 v4, 4, v2")
    p("s_waitcnt lgkmcnt(0)")
    srd(p, 16, 12, 2048 * 512 * 2)
    p("s_lshr_b32 s11, s2, 3")
    p("v_lshlrev_b32 v5, 10, v3"); p("v_lshl_add_u32 v5, v4, 4, v5")
    p(f"s_lshl_b32 s10, s2, 14"); p(f"s_lshl_b32 s9, {s(sWAVE)}, 8"); p("s_add_u32 s10, s10, s9")
    for t in range(4): p(f"buffer_load_dwordx4 {v(8+4*t,4)}, v5, s[16:19], s10 offen offset:{t*64}")
    X = 32
    for t in range(4):
        for d in range(4):
            p(f"v_lshlrev_b32 {v(X+8*t+2*d)}, 16, {v(8+4*t+d)}")
            p(f"v_and_b32 {v(X+8*t+2*d+1)}, 0xffff0000, {v(8+4*t+d)}")
    def wg_sum(r, off):
        xsum(p, r, "v10")
        p("v_lshlrev_b32 v11, 2, v3"); p(f"s_lshl_b32 s24, {s(sWAVE)}, 6"); p("v_add_u32 v12, s24, v11")
        p(f"ds_write_b32 v12, {r} offset:{off}")
        p("s_waitcnt lgkmcnt(0)"); p("s_barrier")
        for k in range(4): p(f"ds_read_b32 {v(12+k)}, v11 offset:{off + k*64}")
        p("v_add_f32 v12, v12, v13"); p("v_add_f32 v14, v14, v15"); p(f"v_add_f32 {r}, v12, v14")
    p(f"v_add_f32 v8, {v(X)}, {v(X+1)}"); p(f"v_add_f32 v9, {v(X+2)}, {v(X+3)}")
    for e in range(4, 32, 2):
        p(f"v_add_f32 v8, v8, {v(X+e)}"); p(f"v_add_f32 v9, v9, {v(X+e+1)}")
    p("v_add_f32 v8, v8, v9")
    wg_sum("v8", 0)
    p("v_mul_f32 v8, 0x3b000000, v8")
    for e in range(32): p(f"v_sub_f32 {v(X+e)}, {v(X+e)}, v8")
    p(f"v_mul_f32 v9, {v(X)}, {v(X)}"); p(f"v_mul_f32 v16, {v(X+1)}, {v(X+1)}")
    for e in range(2, 32, 2):
        p(f"v_fmac_f32 v9, {v(X+e)}, {v(X+e)}"); p(f"v_fmac_f32 v16, {v(X+e+1)}, {v(X+e+1)}")
    p("v_add_f32 v9, v9, v16")
    wg_sum("v9", 256)
    p("v_mov_b32 v11, 0x3727c5ac"); p("v_fmac_f32 v11, 0x3b000000, v9"); p("v_rsq_f32 v11, v11")
    wait_ge(p, "dbg", D_MOD, 48)
    p("v_lshlrev_b32 v6, 5, v4")
    p(f"s_lshl_b32 s13, {s(sWAVE)}, 9")
    shift_row, scale_row = (0, 1) if which == 1 else (3, 4)
    p(f"s_add_u32 s20, s13, {WS_MOD + shift_row*2048}"); p(f"s_add_u32 s21, s13, {WS_MOD + scale_row*2048}")
    SH, SCL = 64, 96
    for t in range(4):
        for hf in range(2):
            p(f"buffer_load_dwordx4 {v(SH+8*t+4*hf,4)}, v6, {SRD}, s20 offen offset:{t*128+hf*16}{SC}")
            p(f"buffer_load_dwordx4 {v(SCL+8*t+4*hf,4)}, v6, {SRD}, s21 offen offset:{t*128+hf*16}{SC}")
    p(f"s_lshl_b32 s22, s2, 14"); p(f"s_lshl_b32 s24, {s(sWAVE)}, 12"); p("s_add_u32 s22, s22, s24")
    p(f"s_add_u32 s22, s22, {WS_H if which == 1 else WS_H2}")
    p("v_lshlrev_b32 v7, 4, v2")
    for t in range(4):
        for e in range(8):
            p(f"v_mul_f32 {v(X+8*t+e)}, {v(X+8*t+e)}, v11")
            p(f"v_fma_f32 {v(X+8*t+e)}, {v(X+8*t+e)}, {v(SCL+8*t+e)}, {v(SH+8*t+e)}")
        for d in range(4): p(f"v_cvt_pk_bf16_f32 {v(16+4*(t%2)+d)}, {v(X+8*t+2*d)}, {v(X+8*t+2*d+1)}")
        p(f"buffer_store_dwordx4 {v(16+4*(t%2),4)}, v7, {SRD}, s22 offen offset:{t*1024}{SC}")
    signal(p, "ws", (F_LN1, "s11"))

def body_att(p, N):
    p("v_and_b32 v2, 63, v0")
    p("s_lshr_b32 s22, s2, 5")
    p("s_lshr_b32 s23, s2, 3")
    p("s_and_b32 s24, s2, 7"); p("s_lshl_b32 s24, s24, 2"); p(f"s_add_u32 s24, s24, {s(sWAVE)}")
    p("s_lshl_b32 s9, s23, 5"); p("s_add_u32 s9, s9, s24")
    p("v_lshlrev_b32 v3, 4, v2"); p("v_and_b32 v4, 15, v2"); p("v_lshrrev_b32 v5, 4, v2")
    p("s_lshl_b32 s10, s9, 13")
    p(f"s_add_u32 s11, s10, {WS_QX}"); p(f"s_add_u32 s12, s10, {WS_KX}"); p(f"s_add_u32 s13, s10, {WS_VX}")
    p("s_lshl_b32 s14, s9, 11"); p(f"s_add_u32 s14, s14, {WS_KM}")
    p("s_lshl_b32 s15, s9, 12"); p(f"s_add_u32 s15, s15, {WS_VM}")
    wait_ge(p, "ws", (F_Q, "s22"), 32)
    g = Region(p, list(range(8, 250)))
    HS = 1088
    Q = {(T, t): g.vr(f"Q{T}{t}", 4) for T in range(2) for t in range(4)}
    K = {(T, t): g.vr(f"K{T}{t}", 4) for T in range(2) for t in range(4)}
    def ld8(D, sreg):
        for i, key in enumerate(sorted(D)):
            if i == 4: g(f"s_add_u32 {sreg}, {sreg}, 4096")
            g(f"buffer_load_dwordx4 {D[key]}, v3, {SRD}, {sreg} offen offset:{(i%4)*1024}{SC}")
    ld8(Q, "s11"); ld8(K, "s12")
    V = {(w, par): g.vr(f"V{w}{par}", 4) for w in range(4) for par in range(2)}
    ld8(V, "s13")
    g.raw("WAITREC")
    kraw = [g.vr(f"kr{w}", 2) for w in range(4)]
    h8 = g.vr("h8")
    g(f"v_lshrrev_b32 {h8}, 1, v3")
    for w in range(4): g(f"buffer_load_dwordx2 {kraw[w]}, {h8}, {SRD}, s14 offen offset:{w*512}{SC}")
    VM = [g.vr(f"VM{w}", 4) for w in range(4)]
    for w in range(4): g(f"buffer_load_dwordx4 {VM[w]}, v3, {SRD}, s15 offen offset:{w*1024}{SC}")
    wa, ra, tt = g.vr("wa"), g.vr("ra"), g.vr("tt")
    g(f"s_mul_i32 s16, {s(sWAVE)}, {2*HS}")
    g(f"v_and_b32 {wa}, 1, v5"); g(f"v_mul_u32_u24 {wa}, {HS}, {wa}")
    g(f"v_lshrrev_b32 {tt}, 1, v5"); g(f"v_lshl_add_u32 {tt}, v4, 1, {tt}")
    g(f"v_lshl_add_u32 {wa}, {tt}, 3, {wa}"); g(f"v_add_u32 {wa}, s16, {wa}")
    for w in range(4): g(f"ds_write_b64 {wa}, {kraw[w]} offset:{w*256}")
    g(f"v_and_b32 {ra}, 1, v2"); g(f"v_mul_u32_u24 {ra}, {HS}, {ra}")
    g(f"v_lshrrev_b32 {tt}, 2, v4"); g(f"v_lshl_add_u32 {tt}, v5, 2, {tt}")
    g(f"v_lshl_add_u32 {ra}, {tt}, 3, {ra}"); g(f"v_add_u32 {ra}, s16, {ra}")
    g("s_waitcnt lgkmcnt(0)")
    KM = [g.vr(f"KM{t}", 4) for t in range(4)]
    for t in range(4):
        for u in range(2): g(f"ds_read_b64_tr_b16 {KM[t][2*u:2*u+2]}, {ra} offset:{(32*t+16*u)*8}")
    thr = g.vr("thr")
    g(f"v_lshlrev_b32 {thr}, 2, v5"); g(f"v_sub_u32 {thr}, v4, {thr}")
    ONE, HALF = g.vr("ONE", 4), g.vr("HALF", 2)
    for i in range(4): g(f"v_mov_b32 {ONE[i]}, 0x3f803f80")
    for i in range(2): g(f"v_mov_b32 {HALF[i]}, 0x3f003f00")
    g("s_mov_b32 s20, 0x3e0293ee"); g("s_mov_b32 s21, 0xff800000")
    g("s_lshl_b32 s17, s23, 18"); g("s_lshl_b32 s18, s24, 12")
    g("s_add_u32 s17, s17, s18"); g(f"s_add_u32 s17, s17, {WS_O}")
    for Tq in range(2):
        SM, S0, S1 = g.vr("SM", 4), g.vr("S0", 4), g.vr("S1", 4)
        for t in range(4):
            z = lambda D: "0" if t == 0 else str(D)
            g(f"{MF32} {S0}, {K[(0,t)]}, {Q[(Tq,t)]}, {z(S0)}")
            if Tq == 1: g(f"{MF32} {S1}, {K[(1,t)]}, {Q[(1,t)]}, {z(S1)}")
        for t in range(4):
            g(f"{MF32} {SM}, {KM[t]}, {Q[(Tq,t)]}, {'0' if t == 0 else SM}")
        SD = S0 if Tq == 0 else S1
        ninf = g.vr("ninf")
        g(f"v_mov_b32 {ninf}, s21")
        for j in range(4):
            g(f"v_cmp_le_i32 vcc, {j}, {thr}")
            g(f"v_cndmask_b32 {SD[j]}, {ninf}, {SD[j]}, vcc")
        vals = [S0[j] for j in range(4)] + ([S1[j] for j in range(4)] if Tq == 1 else []) + [SM[j] for j in range(4)]
        m_, u_ = g.vr("m"), g.vr("u")
        g(f"v_max3_f32 {m_}, {vals[0]}, {vals[1]}, {vals[2]}")
        k = 3
        while k < len(vals):
            if k + 1 < len(vals): g(f"v_max3_f32 {m_}, {m_}, {vals[k]}, {vals[k+1]}"); k += 2
            else: g(f"v_max_f32 {m_}, {m_}, {vals[k]}"); k += 1
        for sw in ("32", "16"):
            g(f"v_mov_b32 {u_}, {m_}"); g(f"v_permlane{sw}_swap_b32 {m_}, {u_}"); g(f"v_max_f32 {m_}, {m_}, {u_}")
        g(f"v_mul_f32 {m_}, s20, {m_}")
        for x in vals: g(f"v_fma_f32 {x}, {x}, s20, -{m_}")
        for x in vals: g(f"v_exp_f32 {x}, {x}")
        P12, PM = g.vr("P12", 4), g.vr("PM", 2)
        g(f"v_cvt_pk_bf16_f32 {P12[0]}, {S0[0]}, {S0[1]}"); g(f"v_cvt_pk_bf16_f32 {P12[1]}, {S0[2]}, {S0[3]}")
        if Tq == 1:
            g(f"v_cvt_pk_bf16_f32 {P12[2]}, {S1[0]}, {S1[1]}"); g(f"v_cvt_pk_bf16_f32 {P12[3]}, {S1[2]}, {S1[3]}")
        else:
            g(f"v_mov_b32 {P12[2]}, 0"); g(f"v_mov_b32 {P12[3]}, 0")
        g(f"v_cvt_pk_bf16_f32 {PM[0]}, {SM[0]}, {SM[1]}"); g(f"v_cvt_pk_bf16_f32 {PM[1]}, {SM[2]}, {SM[3]}")
        L = g.vr("L", 4)
        g(f"{MF32} {L}, {ONE}, {P12}, 0")
        rl = g.vr("rl")
        O = {}
        for w in range(4):
            for par in range(2):
                O[(w, par)] = g.vr(f"O{w}{par}", 4)
                g(f"{MF32} {O[(w,par)]}, {V[(w,par)]}, {P12}, 0")
        g(f"{MF16} {L}, {HALF}, {PM}, {L}")
        for w in range(4):
            for par in range(2):
                g(f"{MF16} {O[(w,par)]}, {VM[w][2*par:2*par+2]}, {PM}, {O[(w,par)]}")
        g(f"v_rcp_f32 {rl}, {L[0]}")
        for w in range(4):
            pk = g.vr("pk", 4)
            for j in range(4):
                g(f"v_mul_f32 {O[(w,0)][j]}, {O[(w,0)][j]}, {rl}")
                g(f"v_mul_f32 {O[(w,1)][j]}, {O[(w,1)][j]}, {rl}")
                g(f"v_cvt_pk_bf16_f32 {pk[j]}, {O[(w,0)][j]}, {O[(w,1)][j]}")
            g(f"buffer_store_dwordx4 {pk}, v3, {SRD}, s17 offen offset:{w*1024}{SC}")
        if Tq == 0: g(f"s_add_u32 s17, s17, {128*1024}")
    class P2:
        pass
    orig_raw = p.raw
    def raw_hook(text):
        if text == "WAITREC":
            p.raw = orig_raw
            p("s_add_u32 s26, s23, 1")
            p("s_cmp_eq_u32 s23, 63"); p(f"s_cselect_b32 s27, 1, 0"); p("s_cselect_b32 s26, 32, s26")
            wait_ge(p, "ws", (F_REC, "s27"), "s26")
            p.raw = raw_hook
        else: orig_raw(text)
    p.raw = raw_hook
    g.finish()
    p.raw = orig_raw
    p("s_add_u32 s25, s22, 1"); p("s_and_b32 s26, s2, 31")
    signal_own(p, A_ATT, "s26", "s25")
```

```python
import sys
sys.path.insert(0, "gen")
from asmlib import *
from layout import *
from sync import *
import rec, tasks, gemm2, gemm3
NAME = "adaLN_cond__memory_aug_recurrent_mem_tr__dense_activation_gelu__prompt"
HEADER = open("cdna_kernels/" + NAME + ".s.ref").read().split("; Override launch geometry")[0]
NWORK = 224
sTASK = 95

def gen_mega(name, opt=None, post=True):
    opt = opt or {}
    THR = 33 if opt.get("force_slow") else 32
    p = Prog()
    p.raw(f".p2align 8\n.type {name},@function\n{name}:")
    p("s_cmp_ge_u32 s2, 256"); p(f"s_cbranch_scc1 L_{name}_exit")
    p(f"s_load_dwordx2 {SDBG}, s[0:1], {KA['dbg']}")
    p(f"s_load_dwordx2 s[4:5], s[0:1], {KA['ws']}")
    p("s_getreg_b32 s3, hwreg(HW_REG_XCC_ID)")
    p("s_and_b32 s3, s3, 15")
    if opt.get("fake_xcc"): p(f"s_and_b32 s3, s2, {opt['fake_xcc']-1}")
    p("v_lshrrev_b32 v1, 6, v0")
    p(f"v_readfirstlane_b32 {s(sWAVE)}, v1")
    p("s_waitcnt lgkmcnt(0)")
    p(f"s_mov_b32 s6, {WS_BYTES}"); p("s_mov_b32 s7, 0x00020000")
    p(f"s_cmp_lg_u32 {s(sWAVE)}, 0")
    p(f"s_cbranch_scc1 L_{name}_el_wait")
    p("s_mov_b64 exec, 1")
    p("v_mov_b32 v2, 1")
    p("s_lshl_b32 s10, s3, 2"); p("v_mov_b32 v3, s10")
    p(f"global_atomic_add v4, v3, v2, {SDBG} sc0")
    p("s_waitcnt vmcnt(0)")
    p(f"v_mov_b32 v3, {D_TOTAL*4}")
    p(f"global_atomic_add v5, v3, v2, {SDBG} sc0")
    p("s_waitcnt vmcnt(0)")
    p("v_readfirstlane_b32 s10, v4")
    p("s_lshl_b32 s14, s3, 8"); p("s_or_b32 s14, s14, s10")
    p("s_cmp_lg_u32 s3, 0"); p(f"s_cbranch_scc1 L_{name}_el_other")
    p(f"s_cmp_lt_u32 s10, 32"); p(f"s_cbranch_scc1 L_{name}_el_pub")
    p.label(f"L_{name}_el_other")
    p(f"s_mov_b32 s11, {SPIN}")
    p.label(f"L_{name}_el_spin")
    p(f"v_mov_b32 v3, {D_TOTAL*4}")
    p(f"global_load_dword v5, v3, {SDBG} sc1")
    p("s_waitcnt vmcnt(0)")
    p("v_mov_b32 v3, 0")
    p(f"global_load_dword v4, v3, {SDBG} sc1")
    p("s_waitcnt vmcnt(0)")
    p("v_readfirstlane_b32 s12, v4"); p("v_readfirstlane_b32 s13, v5")
    p(f"s_cmp_ge_u32 s12, 32"); p(f"s_cbranch_scc1 L_{name}_el_work")
    p("s_cmp_ge_u32 s13, 256"); p(f"s_cbranch_scc1 L_{name}_el_fb")
    p("s_sleep 2")
    p("s_sub_u32 s11, s11, 1"); p(f"s_cbranch_scc0 L_{name}_el_spin")
    p("s_mov_b32 s10, 0x1000"); p(f"s_branch L_{name}_el_pub")
    p.label(f"L_{name}_el_fb")
    p(f"v_mov_b32 v3, {D_FB*4}")
    p(f"global_atomic_add v4, v3, v2, {SDBG} sc0")
    p("s_waitcnt vmcnt(0)")
    p("v_readfirstlane_b32 s10, v4")
    p("s_add_u32 s10, s10, s12")
    p("s_cmp_lt_u32 s10, 32"); p(f"s_cbranch_scc1 L_{name}_el_pub")
    p.label(f"L_{name}_el_work")
    p(f"v_mov_b32 v3, {D_WORK*4}")
    p(f"global_atomic_add v4, v3, v2, {SDBG} sc0")
    p("s_waitcnt vmcnt(0)")
    p("v_readfirstlane_b32 s10, v4")
    p("s_add_u32 s10, s10, 0x100")
    p.label(f"L_{name}_el_pub")
    p("v_mov_b32 v4, s10"); p("v_mov_b32 v5, s14"); p("v_mov_b32 v3, 0")
    p("ds_write_b64 v3, v[4:5]")
    p("s_mov_b64 exec, -1")
    p.label(f"L_{name}_el_wait")
    p("s_waitcnt vmcnt(0) lgkmcnt(0)")
    p("s_barrier")
    p("v_mov_b32 v3, 0")
    p("ds_read_b64 v[4:5], v3")
    p("s_waitcnt lgkmcnt(0)")
    p("v_readfirstlane_b32 s8, v4")
    p("v_readfirstlane_b32 s89, v5")
    p("s_barrier")
    p.flush_state()
    p("s_cmp_lt_u32 s8, 32"); p(f"s_cbranch_scc1 L_{name}_rec")
    p("s_cmp_ge_u32 s8, 0x1000"); p(f"s_cbranch_scc1 L_{name}_exit")
    p(f"s_sub_u32 {s(sTASK)}, s8, 0x100")
    p("v_accvgpr_write_b32 a255, v0")
    def trace(slot_sreg_expr_code, tag):
        if not opt.get("trace"): return
        p.raw("    s_memrealtime s[100:101]")
        p("s_waitcnt lgkmcnt(0)")
        p(f"s_cmp_lg_u32 {s(sWAVE)}, 0"); p(f"s_cbranch_scc1 L_{name}_tr_{tag}")
        slot_sreg_expr_code()
        p("v_mov_b32 v240, s96"); p("v_mov_b32 v241, s98"); p("v_mov_b32 v242, s100"); p(f"v_mov_b32 v243, s88")
        p(f"s_lshl_b32 s88, s88, 4"); p(f"s_add_u32 s88, s88, {WS_DBG + (1<<20)}")
        p("v_mov_b32 v244, 0"); p("s_mov_b64 exec, 1")
        p("buffer_store_dwordx4 v[240:243], v244, s[4:7], s88 offen")
        p("s_mov_b64 exec, -1")
        p.label(f"L_{name}_tr_{tag}")
        p.raw("    s_memrealtime s[96:97]")
    def fin():
        p("s_waitcnt vmcnt(0) lgkmcnt(0)"); p("s_barrier"); p.flush_state()
        p("v_accvgpr_read_b32 v0, a255")
    if opt.get("trace"): p.raw("    s_memrealtime s[96:97]"); p.raw("    s_mov_b32 s98, 0")
    p(f"s_cmp_lt_u32 {s(sTASK)}, 48"); p(f"s_cbranch_scc1 L_{name}_t_mod")
    p(f"s_cmp_lt_u32 {s(sTASK)}, 176"); p(f"s_cbranch_scc1 L_{name}_t_ln1")
    p(f"s_branch L_{name}_ph2")
    p.label(f"L_{name}_t_mod")
    p(f"s_mov_b32 s2, {s(sTASK)}")
    tasks.body_mod(p, name + "_mod"); fin()
    trace(lambda: p(f"s_mov_b32 s88, {s(sTASK)}"), "mod")
    p(f"s_branch L_{name}_ph2")
    p.label(f"L_{name}_t_ln1")
    p.flush_state()
    p(f"s_sub_u32 s2, {s(sTASK)}, 48")
    tasks.body_ln(p, name + "_ln1", 1); fin()
    trace(lambda: p(f"s_mov_b32 s88, {s(sTASK)}"), "ln1")
    p.label(f"L_{name}_ph2")
    p.flush_state()
    wait_ge(p, "dbg", D_TOTAL, 256)
    wait_ge(p, "dbg", D_MOD, 48)
    p("v_and_b32 v2, 63, v0"); p("v_lshlrev_b32 v3, 2, v2"); p("v_min_u32 v3, 28, v3")
    p(f"global_load_dword v4, v3, {SDBG} sc1")
    p("s_waitcnt vmcnt(0)")
    p("v_cmp_ne_u32 vcc, 32, v4")
    p("s_nop 4")
    p("s_cmp_eq_u64 vcc, 0")
    p("s_lshr_b32 s8, s89, 8"); p("s_and_b32 s9, s89, 0xff")
    p("s_sub_u32 s8, s8, 1"); p("s_lshl_b32 s8, s8, 5"); p("s_add_u32 s8, s8, s9")
    p("s_cmp_eq_u64 vcc, 0")
    p(f"s_cselect_b32 {s(sTASK)}, s8, {s(sTASK)}")
    if opt.get("force_slow") or opt.get("fake_xcc"): pass
    p(f"s_lshr_b32 s84, {s(sTASK)}, 5"); p(f"s_and_b32 s85, {s(sTASK)}, 31")
    p("s_cmp_lt_u32 s84, 4"); p("s_cselect_b32 s86, 5, 4")
    p.label(f"L_{name}_qloop")
    p("s_mul_i32 s8, s86, 22"); p("s_cmp_ge_u32 s85, s8"); p(f"s_cbranch_scc1 L_{name}_ph3")
    p("s_mov_b32 s9, 0x40000000"); p("s_cmp_eq_u32 s86, 5"); p("s_cselect_b32 s9, 0x33333334, s9")
    p("s_mul_hi_u32 s10, s85, s9")
    p("s_mul_i32 s11, s10, s86"); p("s_sub_u32 s11, s85, s11"); p("s_mul_i32 s11, s11, 7"); p("s_add_u32 s11, s11, s84")
    p(f"s_cmp_ge_u32 s10, 9"); p(f"s_cbranch_scc1 L_{name}_q_full")
    p(f"s_cmp_ge_u32 s10, 6"); p(f"s_cbranch_scc1 L_{name}_q_q")
    p("s_lshr_b32 s12, s10, 1"); p("s_lshl_b32 s2, s12, 5"); p("s_add_u32 s2, s2, s11"); p("s_mov_b32 s87, s2")
    p("s_bitcmp1_b32 s10, 0"); p(f"s_cbranch_scc1 L_{name}_q_v")
    p("s_mov_b32 s88, 0"); p(f"s_branch L_{name}_q_kq")
    p.label(f"L_{name}_q_q")
    p("s_sub_u32 s12, s10, 6"); p("s_lshl_b32 s2, s12, 5"); p("s_add_u32 s2, s2, s11"); p("s_mov_b32 s87, s2"); p("s_mov_b32 s88, 1")
    p.label(f"L_{name}_q_kq")
    p.flush_state()
    gemm2.body_gemm(p, name + "_kq", "kq"); fin()
    p(f"s_branch L_{name}_q_next")
    p.label(f"L_{name}_q_v")
    p.flush_state()
    gemm2.body_gemm(p, name + "_v", "v"); fin()
    p(f"s_branch L_{name}_q_next")
    p.label(f"L_{name}_q_full")
    p("s_sub_u32 s12, s10, 6"); p("s_lshl_b32 s2, s12, 5"); p("s_add_u32 s2, s2, s11"); p("s_mov_b32 s87, s2")
    p.flush_state()
    gemm2.body_gemm(p, name + "_qkv", "qkv"); fin()
    p.label(f"L_{name}_q_next")
    trace(lambda: p("s_add_u32 s88, s87, 176"), "qkv")
    p("s_add_u32 s85, s85, 32")
    p(f"s_branch L_{name}_qloop")
    p.label(f"L_{name}_ph3")
    p.flush_state()
    p(f"s_and_b32 s8, {s(sTASK)}, 31"); p("s_mul_i32 s8, s8, 7"); p(f"s_lshr_b32 s9, {s(sTASK)}, 5"); p("s_add_u32 s8, s8, s9")
    roles = [("att", 32), ("wo", 64), ("ln2", 32), ("ffn1", 22), ("ffn2", 32)]
    base = 0
    for k, n in roles:
        p(f"s_sub_u32 s2, s8, {base}"); p(f"s_cmp_lt_u32 s8, {base + n}"); p(f"s_cbranch_scc1 L_{name}_r_{k}")
        base += n
    p(f"s_branch L_{name}_exit")
    tbase = 688
    def tr_role(k, ri, n, tbreg):
        rb = sum(x for _, x in roles[:ri])
        trace(lambda: (p(f"s_add_u32 s88, s83, {rb}"), p("s_lshl_b32 s88, s88, 4"), p(f"s_add_u32 s88, s88, {tbreg}"), p(f"s_add_u32 s88, s88, {tbase}")), k)
    p.label(f"L_{name}_r_att"); p.flush_state()
    p("s_mov_b32 s83, s2"); p("s_mov_b32 s82, 0")
    p.label(f"L_{name}_attloop")
    p("s_lshl_b32 s2, s82, 5"); p("s_add_u32 s2, s2, s83")
    tasks.body_att(p, name + "_att"); fin()
    tr_role("att", 0, 32, "s82")
    p("s_add_u32 s82, s82, 1"); p("s_cmp_lt_u32 s82, 16"); p(f"s_cbranch_scc1 L_{name}_attloop")
    p(f"s_branch L_{name}_exit")
    for ri, k in ((1, "wo"), (3, "ffn1"), (4, "ffn2")):
        p.label(f"L_{name}_r_{k}"); p.flush_state()
        p("s_mov_b32 s83, s2")
        p.trace_point = lambda N_, ri=ri, k=k: tr_role(k, ri, 0, "s16")
        gemm3.role_gemm(p, name + "_" + k, k)
        p(f"s_branch L_{name}_exit")
    p.label(f"L_{name}_r_ln2"); p.flush_state()
    p("s_mov_b32 s83, s2")
    p.trace_point = lambda N_: tr_role("ln2", 2, 0, "s30")
    gemm3.role_ln2(p, name + "_ln2")
    p.label(f"L_{name}_exit")
    p("s_endpgm")
    p.label(f"L_{name}_rec")
    p.flush_state()
    rec.gen_rec(name + "_r", opt=opt, prog=p, stamps=bool(opt.get("stamps")))
    return p

def build(path, opt=None):
    n = NAME + "_kernel"
    p = gen_mega(n, opt)
    out = HEADER + f"; @launch grid=(256,1,1) block=(256,1,1) lds={rec.LDS_BYTES}\n"
    out += '.amdgcn_target "amdgcn-amd-amdhsa--gfx950"\n.text\n' + f".globl {n}\n" + p.text() + kd(n).replace(".end_amdhsa_kernel\n.text\n", ".end_amdhsa_kernel\n")
    open(path, "w").write(out)
    return p

if __name__ == "__main__":
    base = {"d1": 12, "d2": 6}
    build("mega_st.s", dict(base, stamps=1))
    import sync
    sync.TRACE = True
    build("mega_tr.s", dict(base, trace=1))
    sync.TRACE = False
    p = build("mega.s", base)
    print(p.stats)
```

```python
from asmlib import *
from layout import *
from sync import *
from small import srd
import tasks
MF32 = "v_mfma_f32_16x16x32_bf16"
LD = " sc1"
SRD = "s[4:7]"
WOSPLIT = 8
L_FFN2 = 65536
L_ATT = 131072
POST_LDS = L_FFN2 + 1408 * 64

CFG = {
    "wo":   dict(TA=2, NT=8, korder="N", KS=16, ldb=1024, A=WS_O,  KTOT=128, nb=4096*512*2, lds0=0),
    "ffn1": dict(TA=2, NT=4, korder="N", KS=16, ldb=2752, A=WS_H2, KTOT=16,  nb=512*1376*2, lds0=0),
    "ffn2": dict(TA=1, NT=2, korder="D", KS=43, ldb=1024, A=WS_F,  KTOT=43,  nb=1376*512*2, lds0=L_FFN2),
}

def swz(p, cfg, dst, rowreg, RB):
    if RB == 256:
        p(f"v_and_b32 {dst}, 3, {rowreg}"); p(f"v_bfe_u32 v21, {rowreg}, 3, 1"); p(f"v_lshl_or_b32 {dst}, v21, 2, {dst}")
    elif RB == 128:
        p(f"v_bfe_u32 {dst}, {rowreg}, 1, 1"); p(f"v_bfe_u32 v21, {rowreg}, 3, 1"); p(f"v_lshl_or_b32 {dst}, v21, 1, {dst}")
    else:
        p(f"v_bfe_u32 {dst}, {rowreg}, 2, 1")

def decode(p, kind):
    if kind == "wo":
        p("s_lshr_b32 s17, s83, 3"); p("s_and_b32 s22, s83, 7")
        p("s_lshl_b32 s10, s17, 7"); p("s_lshl_b32 s11, s22, 4")
    elif kind == "ffn1":
        p("s_lshl_b32 s10, s83, 6"); p("s_mov_b32 s11, 0")
    else:
        p("s_lshr_b32 s17, s83, 1"); p("s_and_b32 s19, s83, 1")
        p("s_lshl_b32 s10, s17, 5"); p("s_mov_b32 s11, 0")

def b_prep(p, kind, vD, sb, waves=4, w0=0):
    cfg = CFG[kind]; NT, KS, ldb, nb = cfg["NT"], cfg["KS"], cfg["ldb"], cfg["nb"]
    RB = NT * 32; RPI = 1024 // RB; LPR = RB // 16
    p(f"s_load_dwordx2 s[60:61], s[0:1], {KA[dict(wo='Wo', ffn1='w1', ffn2='w2')[kind]]}")
    decode(p, kind)
    p("v_and_b32 v2, 63, v0")
    period = max(1, 16 // RPI)
    p(f"v_lshrrev_b32 v6, {LPR.bit_length()-1}, v2"); p(f"v_and_b32 v7, {LPR-1}, v2")
    p(f"s_mov_b32 s20, {ldb}")
    for q in range(period):
        d = vD + q
        p(f"v_add_u32 {v(d)}, {q*RPI}, v6")
        swz(p, cfg, "v20", v(d), RB)
        p("v_lshrrev_b32 v21, 1, v7"); p("v_xor_b32 v21, v21, v20"); p("v_and_b32 v22, 1, v7")
        p("v_lshl_or_b32 v21, v21, 1, v22")
        p(f"v_mul_lo_u32 {v(d)}, {v(d)}, s20")
        p(f"v_lshl_add_u32 {v(d)}, v21, 4, {v(d)}")
    p("s_waitcnt lgkmcnt(0)")
    srd(p, sb, 60, nb)
    p(f"s_sub_u32 s18, {s(sWAVE)}, {w0}")
    p("s_lshl_b32 s29, s10, 1"); p(f"s_mul_i32 s28, s11, {32*ldb}"); p("s_add_u32 s28, s28, s29")
    p(f"s_mul_i32 s29, s18, {period*RPI*ldb}"); p(f"s_add_u32 {s(sb+4)}, s28, s29")
    p(f"s_mul_i32 s30, s18, {period*1024}"); p(f"s_add_u32 {s(sb+5)}, s30, {cfg['lds0']}")

def b_issue(p, kind, vD, sb, waves=4):
    cfg = CFG[kind]; NT, KS, ldb = cfg["NT"], cfg["KS"], cfg["ldb"]
    RB = NT * 32; ROWS = ((KS * 32 + 63) // 64) * 64
    RPI = 1024 // RB; NI = ROWS * RB // 1024; period = max(1, 16 // RPI)
    ngrp = NI // period
    assert NI % period == 0 and ngrp % waves == 0
    for gi in range(ngrp // waves):
        p(f"s_add_u32 s31, {s(sb+4)}, {gi*waves*period*RPI*ldb}")
        p(f"s_add_u32 m0, {s(sb+5)}, {gi*waves*period*1024}")
        for q in range(period):
            if q: p("s_add_u32 m0, m0, 1024")
            p(f"buffer_load_dwordx4 {v(vD+q)}, {s(sb,4)}, s31 offen lds")

def gemm(p, N, kind, st, wait, after_a=None):
    cfg = CFG[kind]; TA, NT, KS, KTOT = cfg["TA"], cfg["NT"], cfg["KS"], cfg["KTOT"]
    RB = NT * 32; W = s(sWAVE)
    decode(p, kind)
    if kind == "ffn1": p(f"s_load_dwordx2 s[66:67], s[0:1], {KA['b1']}")
    if kind == "ffn2":
        p(f"s_load_dwordx2 s[66:67], s[0:1], {KA['b2']}"); p(f"s_load_dwordx2 s[68:69], s[0:1], {KA['out']}")
    p("v_and_b32 v2, 63, v0")
    p("v_lshlrev_b32 v3, 4, v2"); p("v_and_b32 v4, 15, v2"); p("v_lshrrev_b32 v5, 4, v2")
    vR, vR2 = 12, 24
    p("v_lshrrev_b32 v20, 2, v4")
    if cfg["korder"] == "N":
        p("v_lshl_add_u32 v23, v5, 3, v20"); UOFF = 4 * RB
    else:
        p("v_lshl_add_u32 v23, v5, 2, v20"); UOFF = 16 * RB
    swz(p, cfg, "v22", "v23", RB)
    p(f"v_mul_u32_u24 v21, {RB}, v23")
    p("v_and_b32 v23, 3, v2"); p("v_lshl_add_u32 v21, v23, 3, v21")
    for ct in range(NT):
        p(f"v_xor_b32 v23, {ct}, v22")
        p(f"v_lshl_add_u32 {v(vR+ct)}, v23, 5, v21")
        p(f"v_add_u32 {v(vR2+ct)}, 0x10000, {v(vR+ct)}")
    ACC = 32; BF = ACC + TA * NT * 4; NBF = 8; TMP = BF + NBF * 4
    acc = lambda ct, T: ACC + (ct*TA+T)*4
    def areg(T, t):
        i = T*KS + t
        return a(4*i, 4) if i < 32 else v(112 + 4*(i - 32), 4)
    BI = TMP + 16
    p("s_waitcnt lgkmcnt(0)")
    if kind in ("ffn1", "ffn2"):
        srd(p, 48, 66, (1376 if kind == "ffn1" else 512) * 2)
        p("v_lshlrev_b32 v20, 3, v5"); p("s_lshl_b32 s37, s10, 1")
        for ct in range(NT): p(f"buffer_load_dwordx2 {v(BI+2*ct,2)}, v20, s[48:51], s37 offen offset:{ct*32}")
    if kind == "ffn2": srd(p, 52, 68, 2048 * 512 * 2)
    wait()
    p.flush_state()
    if TA == 2: p(f"s_lshl_b32 s9, s16, 3"); p(f"s_lshl_b32 s18, {W}, 1"); p("s_add_u32 s9, s9, s18")
    else:       p(f"s_lshl_b32 s9, s16, 3"); p("s_lshl_b32 s18, s19, 2"); p("s_add_u32 s9, s9, s18"); p(f"s_add_u32 s9, s9, {W}")
    p(f"s_mul_i32 s23, s9, {KTOT*1024}"); p("s_lshl_b32 s24, s11, 10"); p("s_add_u32 s23, s23, s24")
    p(f"s_add_u32 s23, s23, {cfg['A']}"); p(f"s_add_u32 s24, s23, {KTOT*1024}")
    for t in range(KS):
        for T in range(TA):
            if t % 4 == 0 and t: p(f"s_add_u32 {s(23+T)}, {s(23+T)}, 4096")
            p(f"buffer_load_dwordx4 {areg(T, t)}, v3, {SRD}, {s(23+T)} offen offset:{(t%4)*1024}{LD}")
    if kind == "ffn2":
        p("v_lshlrev_b32 v21, 4, v5"); p("s_lshl_b32 s38, s10, 2"); p(f"s_add_u32 s38, s38, {WS_MOD + 5*2048}")
        p("v_lshlrev_b32 v22, 11, v4"); p("v_lshl_add_u32 v22, v5, 4, v22")
        p("s_lshl_b32 s39, s9, 15"); p("s_lshl_b32 s56, s10, 2"); p("s_add_u32 s39, s39, s56"); p(f"s_add_u32 s39, s39, {WS_X1}")
        for ct in range(NT):
            p(f"buffer_load_dwordx4 {v(TMP+24+4*ct,4)}, v21, {SRD}, s38 offen offset:{ct*64}{LD}")
            p(f"buffer_load_dwordx4 {v(TMP+32+4*ct,4)}, v22, {SRD}, s39 offen offset:{ct*64}{LD}")
    if after_a: after_a()
    seq = [(t, ct) for t in range(KS) for ct in range(NT)] if kind != "wo" else [(t, ct) for ct in range(NT) for t in range(KS)]
    if kind == "wo":
        p("s_lshl_b32 s36, s22, 22"); p("s_lshl_b32 s37, s9, 15"); p("s_add_u32 s36, s36, s37")
        p("s_lshl_b32 s37, s10, 2"); p("s_add_u32 s36, s36, s37"); p(f"s_add_u32 s36, s36, {WS_PW}"); p("s_add_u32 s37, s36, 32768")
        p("v_lshlrev_b32 v20, 11, v4"); p("v_lshl_add_u32 v20, v5, 4, v20")
    def wo_store(ct):
        for T in range(TA): p(f"buffer_store_dwordx4 {v(acc(ct,T),4)}, v20, {SRD}, {'s36' if T == 0 else 's37'} offen offset:{ct*64}{st}")
    def rd(k):
        t, ct = seq[k]; r = BF + (k % NBF) * 4
        for u in range(2):
            o = cfg["lds0"] + t * 32 * RB + u * UOFF
            if o < 65536: p(f"ds_read_b64_tr_b16 {v(r+2*u,2)}, {v(vR+ct)} offset:{o}")
            elif o < 131072: p(f"ds_read_b64_tr_b16 {v(r+2*u,2)}, {v(vR2+ct)} offset:{o-65536}")
            else: raise ValueError
    if cfg["lds0"] + KS * 32 * RB > 131072:
        pass
    LA = NBF - 2
    def rd2(k):
        t, ct = seq[k]; r = BF + (k % NBF) * 4
        for u in range(2):
            o = cfg["lds0"] + t * 32 * RB + u * UOFF
            base, off = (vR, o) if o < 65536 else ((vR2, o - 65536) if o < 131072 else (vR2 + 4, o - 131072))
            p(f"ds_read_b64_tr_b16 {v(r+2*u,2)}, {v(base+ct)} offset:{off}")
    if kind == "ffn2":
        for ct in range(NT): p(f"v_add_u32 {v(vR2+4+ct)}, 0x20000, {v(vR+ct)}")
    for k in range(LA): rd2(k)
    for k, (t, ct) in enumerate(seq):
        r = BF + (k % NBF) * 4
        for T in range(TA):
            ac = v(acc(ct, T), 4)
            p(f"{MF32} {ac}, {v(r,4)}, {areg(T, t)}, {'0' if t == 0 else ac}")
            if T == 0 and k + LA < len(seq): rd2(k + LA)
        if kind == "wo" and t == 3 and ct > 0: wo_store(ct - 1)
    if kind == "wo":
        wo_store(NT - 1)
    elif kind == "ffn1":
        p(f"s_mul_i32 s36, s9, {43*1024}"); p("s_lshr_b32 s38, s10, 5"); p("s_lshl_b32 s39, s38, 10")
        p("s_add_u32 s36, s36, s39"); p(f"s_add_u32 s36, s36, {WS_F}")
        p("s_mov_b32 s52, 0x3d372713"); p("s_mov_b32 s53, 0x40135761")
        for T in range(TA):
            for u in range(NT // 2):
                pk = TMP + 4 * (u % 2)
                for half, ct in enumerate((2*u, 2*u+1)):
                    a0 = acc(ct, T)
                    ts = [v(TMP + 8 + j) for j in range(4)]
                    for j in range(4):
                        b = v(BI + 2*ct + j//2)
                        if j % 2 == 0: p(f"v_lshlrev_b32 {ts[j]}, 16, {b}")
                        else: p(f"v_and_b32 {ts[j]}, 0xffff0000, {b}")
                    for j in range(4): p(f"v_add_f32 {v(a0+j)}, {v(a0+j)}, {ts[j]}")
                    for j in range(4): p(f"v_mul_f32 {ts[j]}, {v(a0+j)}, {v(a0+j)}")
                    for j in range(4): p(f"v_fma_f32 {ts[j]}, {ts[j]}, s52, 1.0")
                    for j in range(4): p(f"v_mul_f32 {ts[j]}, {ts[j]}, {v(a0+j)}")
                    for j in range(4): p(f"v_mul_f32 {ts[j]}, s53, {ts[j]}")
                    for j in range(4): p(f"v_exp_f32 {ts[j]}, -{ts[j]}")
                    for j in range(4): p(f"v_add_f32 {ts[j]}, 1.0, {ts[j]}")
                    for j in range(4): p(f"v_rcp_f32 {ts[j]}, {ts[j]}")
                    for j in range(4): p(f"v_mul_f32 {v(a0+j)}, {v(a0+j)}, {ts[j]}")
                    p(f"v_cvt_pk_bf16_f32 {v(pk+2*half)}, {v(a0)}, {v(a0+1)}")
                    p(f"v_cvt_pk_bf16_f32 {v(pk+2*half+1)}, {v(a0+2)}, {v(a0+3)}")
                p(f"s_add_u32 s39, s38, {u}"); p("s_cmp_ge_u32 s39, 43"); p(f"s_cbranch_scc1 L_{N}_sk{T}{u}")
                p(f"buffer_store_dwordx4 {v(pk,4)}, v3, {SRD}, s36 offen offset:{u*1024}{st}")
                p.label(f"L_{N}_sk{T}{u}")
            if T == 0: p(f"s_add_u32 s36, s36, {43*1024}")
    else:
        p("v_lshlrev_b32 v23, 10, v4"); p("v_lshl_add_u32 v23, v5, 3, v23")
        p("s_lshl_b32 s57, s9, 14"); p("s_lshl_b32 s56, s10, 1"); p("s_add_u32 s57, s57, s56")
        for ct in range(NT):
            a0 = acc(ct, 0)
            for j in range(4):
                b = v(BI + 2*ct + j//2); t1 = v(TMP + 8)
                if j % 2 == 0: p(f"v_lshlrev_b32 {t1}, 16, {b}")
                else: p(f"v_and_b32 {t1}, 0xffff0000, {b}")
                p(f"v_add_f32 {v(a0+j)}, {v(a0+j)}, {t1}")
                p(f"v_fma_f32 {v(a0+j)}, {v(a0+j)}, {v(TMP+24+4*ct+j)}, {v(TMP+32+4*ct+j)}")
            p(f"v_cvt_pk_bf16_f32 {v(TMP+10)}, {v(a0)}, {v(a0+1)}"); p(f"v_cvt_pk_bf16_f32 {v(TMP+11)}, {v(a0+2)}, {v(a0+3)}")
            p(f"buffer_store_dwordx2 {v(TMP+10,2)}, v23, s[52:55], s57 offen offset:{ct*32}")

def ln2(p, N, st, wait, mid=None):
    W = s(sWAVE)
    p(f"s_load_dwordx2 s[12:13], s[0:1], {KA['x']}")
    p("v_and_b32 v2, 63, v0")
    p("s_waitcnt lgkmcnt(0)")
    srd(p, 40, 12, 2048 * 512 * 2)
    p("v_lshlrev_b32 v5, 4, v2"); p("v_lshlrev_b32 v6, 5, v2")
    GA, SH, SCL = 16, 24, 32
    for reg, row in ((GA, 2), (SH, 3), (SCL, 4)):
        p(f"s_mov_b32 s20, {WS_MOD + row*2048}")
        for hf in range(2): p(f"buffer_load_dwordx4 {v(reg+4*hf,4)}, v6, {SRD}, s20 offen offset:{hf*16}{LD}")
    p("v_lshrrev_b32 v7, 2, v2"); p("v_lshlrev_b32 v7, 10, v7"); p("v_and_b32 v8, 3, v2"); p("v_lshl_add_u32 v7, v8, 8, v7")
    p("s_lshl_b32 s9, s16, 7"); p("s_lshl_b32 s10, s83, 2"); p("s_add_u32 s9, s9, s10"); p(f"s_add_u32 s9, s9, {W}")
    p("s_lshl_b32 s10, s9, 10")
    p("buffer_load_dwordx4 v[8:11], v5, s[40:43], s10 offen")
    X = 40
    for d in range(4):
        p(f"v_lshlrev_b32 {v(X+2*d)}, 16, {v(8+d)}"); p(f"v_and_b32 {v(X+2*d+1)}, 0xffff0000, {v(8+d)}")
    p("s_lshl_b32 s11, s9, 11")
    p("s_lshr_b32 s12, s9, 4"); p("s_lshl_b32 s12, s12, 14"); p("s_and_b32 s13, s9, 15"); p("s_lshl_b32 s13, s13, 4")
    p("s_add_u32 s12, s12, s13"); p(f"s_add_u32 s12, s12, {WS_H2}")
    wait()
    PB = 64
    for sp in range(WOSPLIT):
        p(f"s_add_u32 s23, s11, {WS_PW + sp * 4 * MB}")
        for hf in range(2): p(f"buffer_load_dwordx4 {v(PB+8*sp+4*hf,4)}, v6, {SRD}, s23 offen offset:{hf*16}{LD}")
    if mid: mid()
    for sp in range(1, WOSPLIT):
        for e in range(0, 8, 2): p(f"v_pk_add_f32 {v(PB+e,2)}, {v(PB+e,2)}, {v(PB+8*sp+e,2)}")
    for e in range(8): p(f"v_fmac_f32 {v(X+e)}, {v(GA+e)}, {v(PB+e)}")
    p(f"s_add_u32 s23, s11, {WS_X1}")
    for hf in range(2): p(f"buffer_store_dwordx4 {v(X+4*hf,4)}, v6, {SRD}, s23 offen offset:{hf*16}{st}")
    def wsum2(r, q):
        for sh in (1, 2, 4, 8):
            p(f"v_add_f32_dpp {r}, {r}, {r} row_ror:{sh} row_mask:0xf bank_mask:0xf")
            p(f"v_add_f32_dpp {q}, {q}, {q} row_ror:{sh} row_mask:0xf bank_mask:0xf")
        for sw in ("16", "32"):
            p(f"v_mov_b32 v12, {r}"); p(f"v_mov_b32 v56, {q}")
            p(f"v_permlane{sw}_swap_b32 {r}, v12"); p(f"v_permlane{sw}_swap_b32 {q}, v56")
            p(f"v_add_f32 {r}, {r}, v12"); p(f"v_add_f32 {q}, {q}, v56")
    def wsum(r):
        for sh in (1, 2, 4, 8): p(f"v_add_f32_dpp {r}, {r}, {r} row_ror:{sh} row_mask:0xf bank_mask:0xf")
        p(f"v_mov_b32 v12, {r}"); p(f"v_permlane16_swap_b32 {r}, v12"); p(f"v_add_f32 {r}, {r}, v12")
        p(f"v_mov_b32 v12, {r}"); p(f"v_permlane32_swap_b32 {r}, v12"); p(f"v_add_f32 {r}, {r}, v12")
    p(f"v_add_f32 v13, {v(X)}, {v(X+1)}")
    for e in range(2, 8): p(f"v_add_f32 v13, v13, {v(X+e)}")
    wsum("v13")
    p("v_mul_f32 v13, 0x3b000000, v13")
    for e in range(8): p(f"v_sub_f32 {v(56+e)}, {v(X+e)}, v13")
    p(f"v_mul_f32 v14, v56, v56")
    for e in range(1, 8): p(f"v_fmac_f32 v14, {v(56+e)}, {v(56+e)}")
    wsum("v14")
    p("v_mov_b32 v15, 0x3727c5ac"); p("v_fmac_f32 v15, 0x3b000000, v14"); p("v_rsq_f32 v15, v15")
    for e in range(8):
        p(f"v_mul_f32 {v(56+e)}, {v(56+e)}, v15")
        p(f"v_fma_f32 {v(56+e)}, {v(56+e)}, {v(SCL+e)}, {v(SH+e)}")
    for d in range(4): p(f"v_cvt_pk_bf16_f32 {v(48+d)}, {v(56+2*d)}, {v(56+2*d+1)}")
    p(f"buffer_store_dwordx4 v[48:51], v7, {SRD}, s12 offen{st}")

def stash_reg(i):
    return a(128 + 4*i, 4) if i < 31 else v(200 + 4*(i - 31), 4)
def stash_move(p, load, part="both", va=6, vb=7, st_=9):
    p(f"v_and_b32 {v(vb)}, 63, v0"); p(f"v_lshlrev_b32 {v(vb)}, 4, {v(vb)}")
    if part in ("both", "w1"):
        p(f"s_lshl_b32 {s(st_)}, {s(sWAVE)}, 14"); p(f"v_add_u32 {v(va)}, {s(st_)}, {v(vb)}")
    if part in ("both", "w2"):
        p(f"s_mul_i32 {s(st_)}, {s(sWAVE)}, {22*1024}"); p(f"s_add_u32 {s(st_)}, {s(st_)}, {L_FFN2}"); p(f"v_add_u32 {v(vb)}, {s(st_)}, {v(vb)}")
    for i in range(38):
        if (i < 16 and part == "w2") or (i >= 16 and part == "w1"): continue
        adr, off = (v(va), i * 1024) if i < 16 else (v(vb), (i - 16) * 1024)
        if load: p(f"ds_read_b128 {stash_reg(i)}, {adr} offset:{off}")
        else: p(f"ds_write_b128 {adr}, {stash_reg(i)} offset:{off}")

G_BASE = 128
def gsignal(p, stage, st, low_only=False):
    import sync
    sync._uid[0] += 1; u = sync._uid[0]
    if low_only:
        p(f"s_cmp_ge_u32 {s(sWAVE)}, 2"); p(f"s_cbranch_scc1 L_g{u}_nd")
        p("s_waitcnt vmcnt(0)")
        p.label(f"L_g{u}_nd")
    else: p("s_waitcnt vmcnt(0)")
    p("s_barrier")
    saved = (list(p.vm), p.vm_total)
    p(f"s_cmp_lg_u32 {s(sWAVE)}, 0"); p(f"s_cbranch_scc1 L_g{u}_done")
    p("s_lshl_b32 s79, s84, 9"); p("s_lshl_b32 s93, s83, 2"); p("s_add_u32 s79, s79, s93"); p(f"s_add_u32 s79, s79, {WS_FLAG + (G_BASE + stage)*128}")
    p("v_mov_b32 v250, 0"); p("v_mov_b32 v251, s82")
    p("s_mov_b64 exec, 1")
    p(f"buffer_store_dword v251, v250, s[4:7], s79 offen{st}")
    p("s_mov_b64 exec, -1")
    p.label(f"L_g{u}_done")
    p.vm, p.vm_total = saved

def gwait(p, stage, n, extra_vm=False, solo=False):
    import sync
    sync._uid[0] += 1; u = sync._uid[0]
    saved = (list(p.vm), p.vm_total, list(p.lgkm), set(p.smem_pending))
    if extra_vm: p("s_waitcnt vmcnt(0)")
    if not solo: p(f"s_cmp_lg_u32 {s(sWAVE)}, 0"); p(f"s_cbranch_scc1 L_g{u}_done")
    p("s_lshl_b32 s79, s84, 9"); p(f"s_add_u32 s79, s79, {WS_FLAG + (G_BASE + stage)*128}")
    p("v_mbcnt_lo_u32_b32 v250, -1, 0"); p("v_mbcnt_hi_u32_b32 v250, -1, v250")
    p(f"v_min_u32 v250, {n-1}, v250"); p("v_lshlrev_b32 v250, 2, v250")
    p(f"s_mov_b32 s94, {SPIN}")
    p.label(f"L_g{u}_spin")
    p("buffer_load_dword v251, v250, s[4:7], s79 offen sc1")
    p("s_waitcnt vmcnt(0)")
    p("v_cmp_gt_u32 vcc, s82, v251")
    p(f"s_cbranch_vccz L_g{u}_done")
    p("s_sub_u32 s94, s94, 1")
    p(f"s_cbranch_scc0 L_g{u}_spin")
    p.label(f"L_g{u}_done")
    if not solo: p("s_barrier")
    if sync.TRACE: p.raw("    s_memrealtime s[98:99]")
    p.vm, p.vm_total, p.lgkm, p.smem_pending = saved

def gen_post(p, N, st, fin, trace):
    p("s_mov_b32 s83, s85")
    p("s_mov_b32 s81, s84")
    p("s_mov_b32 s82, 1")
    p("s_barrier")
    p("s_cmp_ge_u32 s83, 22"); p(f"s_cbranch_scc1 L_{N}_i1")
    b_prep(p, "ffn1", 8, 12); b_issue(p, "ffn1", 8, 12)
    p.label(f"L_{N}_i1")
    b_prep(p, "ffn2", 8, 12); b_issue(p, "ffn2", 8, 12)
    p("s_waitcnt vmcnt(0)"); p("s_barrier"); p.flush_state()
    stash_move(p, True)
    p("s_waitcnt lgkmcnt(0)"); p("s_barrier"); p.flush_state()
    p.label(f"L_{N}_loop")
    p("s_cmp_ge_u32 s81, 16"); p(f"s_cbranch_scc1 L_{N}_end")
    p.flush_state()
    b_prep(p, "wo", 8, 12); b_issue(p, "wo", 8, 12)
    p.flush_state()
    p("s_lshl_b32 s2, s81, 5"); p("s_add_u32 s2, s2, s83")
    tasks.body_att(p, N + "_att", st=st, lds0=L_ATT, sig=lambda: gsignal(p, 0, st), vmax=200)
    trace(0)
    p("s_mov_b32 s16, s81")
    gemm(p, N + "_wo", "wo", st, lambda: gwait(p, 0, 32, True))
    gsignal(p, 1, st)
    trace(1)
    p.flush_state()
    p("s_mov_b32 s16, s81")
    ln2(p, N + "_ln2", st, lambda: gwait(p, 1, 32), mid=lambda: stash_move(p, False, "w1", 52, 53, 14))
    p("s_waitcnt lgkmcnt(0)")
    gsignal(p, 2, st)
    trace(2)
    p.flush_state()
    p("s_cmp_ge_u32 s83, 22"); p(f"s_cbranch_scc1 L_{N}_nof1b")
    p("s_mov_b32 s16, s81")
    gemm(p, N + "_f1", "ffn1", st, lambda: gwait(p, 2, 32), after_a=lambda: stash_move(p, False, "w2", 196, 197, 40))
    p("s_waitcnt lgkmcnt(0)")
    gsignal(p, 3, st)
    p(f"s_branch L_{N}_f1d")
    p.label(f"L_{N}_nof1b")
    p.flush_state()
    stash_move(p, False, "w2", 196, 197, 40)
    p("s_waitcnt lgkmcnt(0)")
    p.label(f"L_{N}_f1d")
    trace(3)
    p.flush_state()
    p("s_mov_b32 s16, s81")
    gemm(p, N + "_f2", "ffn2", st, lambda: gwait(p, 3, 22))
    p("s_waitcnt vmcnt(0) lgkmcnt(0)"); p("s_barrier")
    trace(4)
    p("s_add_u32 s81, s81, 7"); p("s_add_u32 s82, s82, 1")
    p(f"s_branch L_{N}_loop")
    p.label(f"L_{N}_end")
```

```python
from asmlib import *
from layout import *
from sync import *
from small import srd
MF32 = "v_mfma_f32_16x16x32_bf16"; MF16 = "v_mfma_f32_16x16x16_bf16"
SC = " sc1"
SRD = "s[4:7]"

def body_mod(p, N):
    p(f"s_load_dwordx2 s[12:13], s[0:1], {KA['c']}")
    p(f"s_load_dwordx2 s[14:15], s[0:1], {KA['wmod']}")
    p("s_waitcnt lgkmcnt(0)")
    srd(p, 16, 12, 1024); srd(p, 20, 14, 512 * 3072 * 2)
    p("v_lshrrev_b32 v3, 3, v0"); p("v_and_b32 v4, 7, v0")
    p(f"v_mul_u32_u24 v5, {16*6144}, v3"); p("v_lshl_add_u32 v5, v4, 4, v5")
    p("s_lshl_b32 s3, s2, 7")
    for k in range(16):
        p(f"s_add_u32 s24, s3, {k*6144}")
        p(f"buffer_load_dwordx4 {v(32+4*k,4)}, v5, s[20:23], s24 offen")
    p("v_lshlrev_b32 v6, 5, v3")
    p("buffer_load_dwordx4 v[8:11], v6, s[16:19], 0 offen"); p("buffer_load_dwordx4 v[12:15], v6, s[16:19], 0 offen offset:16")
    for d in range(8):
        for hh in range(2):
            x = v(16 + 2*d + hh)
            if hh == 0: p(f"v_lshlrev_b32 {x}, 16, {v(8+d)}")
            else: p(f"v_and_b32 {x}, 0xffff0000, {v(8+d)}")
    for k in range(16):
        x = v(16 + k)
        p(f"v_mul_f32 v7, 0xbfb8aa3b, {x}"); p("v_exp_f32 v7, v7"); p("v_add_f32 v7, 1.0, v7"); p("v_rcp_f32 v7, v7"); p(f"v_mul_f32 {x}, {x}, v7")
    for k in range(0, 16, 2):
        p(f"v_cvt_pk_bf16_f32 v7, {v(16+k)}, {v(17+k)}")
        p(f"v_lshlrev_b32 {v(16+k)}, 16, v7"); p(f"v_and_b32 {v(17+k)}, 0xffff0000, v7")
    ACC = 100
    for e in range(8): p(f"v_mov_b32 {v(ACC+e)}, 0")
    for k in range(16):
        for d in range(4):
            w_ = v(32 + 4*k + d)
            p(f"v_lshlrev_b32 v6, 16, {w_}"); p(f"v_and_b32 v7, 0xffff0000, {w_}")
            p(f"v_fmac_f32 {v(ACC+2*d)}, {v(16+k)}, v6"); p(f"v_fmac_f32 {v(ACC+2*d+1)}, {v(16+k)}, v7")
    p("v_lshlrev_b32 v6, 8, v3"); p("v_lshl_add_u32 v6, v4, 5, v6")
    p(f"ds_write_b128 v6, {v(ACC,4)}"); p(f"ds_write_b128 v6, {v(ACC+4,4)} offset:16")
    p("s_waitcnt lgkmcnt(0)"); p("s_barrier")
    p(f"s_cmp_lg_u32 {s(sWAVE)}, 0"); p(f"s_cbranch_scc1 L_{N}_sig")
    p("v_lshlrev_b32 v10, 2, v0")
    for k in range(32): p(f"ds_read_b32 {v(32+k)}, v10 offset:{k*256}")
    for st_ in (16, 8, 4, 2, 1):
        for k in range(st_): p(f"v_add_f32 {v(32+k)}, {v(32+k)}, {v(32+k+st_)}")
    p("v_mov_b32 v16, v32")
    p("v_cvt_pk_bf16_f32 v16, v16, v16"); p("v_lshlrev_b32 v16, 16, v16")
    p("s_lshr_b32 s24, s2, 3")
    p("s_cmp_eq_u32 s24, 1"); p("s_cselect_b32 s25, 1, 0")
    p("s_cmp_eq_u32 s24, 4"); p("s_cselect_b32 s25, 1, s25")
    p("s_cmp_eq_u32 s25, 0"); p(f"s_cbranch_scc1 L_{N}_st")
    p("v_add_f32 v16, 1.0, v16"); p("v_cvt_pk_bf16_f32 v16, v16, v16"); p("v_lshlrev_b32 v16, 16, v16")
    p.label(f"L_{N}_st")
    p("s_lshl_b32 s3, s2, 8"); p(f"s_add_u32 s3, s3, {WS_MOD}")
    p(f"buffer_store_dword v16, v10, {SRD}, s3 offen{SC}")
    p.label(f"L_{N}_sig")
    p.flush_state()
    p("s_cmp_ge_u32 s2, 20"); p(f"s_cbranch_scc1 L_{N}_nz")
    p("v_lshlrev_b32 v1, 2, v0"); p("v_mov_b32 v2, 0")
    p("s_lshl_b32 s3, s2, 10"); p(f"s_add_u32 s3, s3, {WS_FLAG}")
    p(f"buffer_store_dword v2, v1, {SRD}, s3 offen{SC}")
    p.label(f"L_{N}_nz")
    signal(p, "dbg", D_MOD)

def xsum(p, r, t):
    p(f"v_mov_b32 {t}, {r}"); p(f"v_permlane32_swap_b32 {r}, {t}"); p(f"v_add_f32 {r}, {r}, {t}")
    p(f"v_mov_b32 {t}, {r}"); p(f"v_permlane16_swap_b32 {r}, {t}"); p(f"v_add_f32 {r}, {r}, {t}")

def body_ln(p, N, which):
    p(f"s_load_dwordx2 s[12:13], s[0:1], {KA['x']}")
    p("v_and_b32 v2, 63, v0")
    p("v_and_b32 v3, 15, v2"); p("v_lshrrev_b32 v4, 4, v2")
    p("s_waitcnt lgkmcnt(0)")
    srd(p, 16, 12, 2048 * 512 * 2)
    p("s_lshr_b32 s11, s2, 3")
    p("v_lshlrev_b32 v5, 10, v3"); p("v_lshl_add_u32 v5, v4, 4, v5")
    p(f"s_lshl_b32 s10, s2, 14"); p(f"s_lshl_b32 s9, {s(sWAVE)}, 8"); p("s_add_u32 s10, s10, s9")
    for t in range(4): p(f"buffer_load_dwordx4 {v(8+4*t,4)}, v5, s[16:19], s10 offen offset:{t*64}")
    X = 32
    for t in range(4):
        for d in range(4):
            p(f"v_lshlrev_b32 {v(X+8*t+2*d)}, 16, {v(8+4*t+d)}")
            p(f"v_and_b32 {v(X+8*t+2*d+1)}, 0xffff0000, {v(8+4*t+d)}")
    def wg_sum(r, off):
        xsum(p, r, "v10")
        p("v_lshlrev_b32 v11, 2, v3"); p(f"s_lshl_b32 s24, {s(sWAVE)}, 6"); p("v_add_u32 v12, s24, v11")
        p(f"ds_write_b32 v12, {r} offset:{off}")
        p("s_waitcnt lgkmcnt(0)"); p("s_barrier")
        for k in range(4): p(f"ds_read_b32 {v(12+k)}, v11 offset:{off + k*64}")
        p("v_add_f32 v12, v12, v13"); p("v_add_f32 v14, v14, v15"); p(f"v_add_f32 {r}, v12, v14")
    p(f"v_add_f32 v8, {v(X)}, {v(X+1)}"); p(f"v_add_f32 v9, {v(X+2)}, {v(X+3)}")
    for e in range(4, 32, 2):
        p(f"v_add_f32 v8, v8, {v(X+e)}"); p(f"v_add_f32 v9, v9, {v(X+e+1)}")
    p("v_add_f32 v8, v8, v9")
    wg_sum("v8", 0)
    p("v_mul_f32 v8, 0x3b000000, v8")
    for e in range(32): p(f"v_sub_f32 {v(X+e)}, {v(X+e)}, v8")
    p(f"v_mul_f32 v9, {v(X)}, {v(X)}"); p(f"v_mul_f32 v16, {v(X+1)}, {v(X+1)}")
    for e in range(2, 32, 2):
        p(f"v_fmac_f32 v9, {v(X+e)}, {v(X+e)}"); p(f"v_fmac_f32 v16, {v(X+e+1)}, {v(X+e+1)}")
    p("v_add_f32 v9, v9, v16")
    wg_sum("v9", 256)
    p("v_mov_b32 v11, 0x3727c5ac"); p("v_fmac_f32 v11, 0x3b000000, v9"); p("v_rsq_f32 v11, v11")
    wait_ge(p, "dbg", D_MOD, 48)
    p("v_lshlrev_b32 v6, 5, v4")
    p(f"s_lshl_b32 s13, {s(sWAVE)}, 9")
    shift_row, scale_row = (0, 1) if which == 1 else (3, 4)
    p(f"s_add_u32 s20, s13, {WS_MOD + shift_row*2048}"); p(f"s_add_u32 s21, s13, {WS_MOD + scale_row*2048}")
    SH, SCL = 64, 96
    for t in range(4):
        for hf in range(2):
            p(f"buffer_load_dwordx4 {v(SH+8*t+4*hf,4)}, v6, {SRD}, s20 offen offset:{t*128+hf*16}{SC}")
            p(f"buffer_load_dwordx4 {v(SCL+8*t+4*hf,4)}, v6, {SRD}, s21 offen offset:{t*128+hf*16}{SC}")
    p(f"s_lshl_b32 s22, s2, 14"); p(f"s_lshl_b32 s24, {s(sWAVE)}, 12"); p("s_add_u32 s22, s22, s24")
    p(f"s_add_u32 s22, s22, {WS_H if which == 1 else WS_H2}")
    p("v_lshlrev_b32 v7, 4, v2")
    for t in range(4):
        for e in range(8):
            p(f"v_mul_f32 {v(X+8*t+e)}, {v(X+8*t+e)}, v11")
            p(f"v_fma_f32 {v(X+8*t+e)}, {v(X+8*t+e)}, {v(SCL+8*t+e)}, {v(SH+8*t+e)}")
        for d in range(4): p(f"v_cvt_pk_bf16_f32 {v(16+4*(t%2)+d)}, {v(X+8*t+2*d)}, {v(X+8*t+2*d+1)}")
        p(f"buffer_store_dwordx4 {v(16+4*(t%2),4)}, v7, {SRD}, s22 offen offset:{t*1024}{SC}")
    signal(p, "ws", (F_LN1, "s11"))

def body_att(p, N, st=SC, lds0=0, sig=None, vmax=250):
    p("v_and_b32 v2, 63, v0")
    p("s_lshr_b32 s22, s2, 5")
    p("s_lshr_b32 s23, s2, 3")
    p("s_and_b32 s24, s2, 7"); p("s_lshl_b32 s24, s24, 2"); p(f"s_add_u32 s24, s24, {s(sWAVE)}")
    p("s_lshl_b32 s9, s23, 5"); p("s_add_u32 s9, s9, s24")
    p("v_lshlrev_b32 v3, 4, v2"); p("v_and_b32 v4, 15, v2"); p("v_lshrrev_b32 v5, 4, v2")
    p("s_lshl_b32 s10, s9, 13")
    p(f"s_add_u32 s11, s10, {WS_QX}"); p(f"s_add_u32 s12, s10, {WS_KX}"); p(f"s_add_u32 s13, s10, {WS_VX}")
    p("s_lshl_b32 s14, s9, 11"); p(f"s_add_u32 s14, s14, {WS_KM}")
    p("s_lshl_b32 s15, s9, 12"); p(f"s_add_u32 s15, s15, {WS_VM}")
    wait_ge(p, "ws", (F_Q, "s22"), 32)
    g = Region(p, list(range(8, vmax)))
    HS = 1088
    Q = {(T, t): g.vr(f"Q{T}{t}", 4) for T in range(2) for t in range(4)}
    K = {(T, t): g.vr(f"K{T}{t}", 4) for T in range(2) for t in range(4)}
    def ld8(D, sreg):
        for i, key in enumerate(sorted(D)):
            if i == 4: g(f"s_add_u32 {sreg}, {sreg}, 4096")
            g(f"buffer_load_dwordx4 {D[key]}, v3, {SRD}, {sreg} offen offset:{(i%4)*1024}{SC}")
    ld8(Q, "s11"); ld8(K, "s12")
    V = {(w, par): g.vr(f"V{w}{par}", 4) for w in range(4) for par in range(2)}
    ld8(V, "s13")
    thr = g.vr("thr")
    g(f"v_lshlrev_b32 {thr}, 2, v5"); g(f"v_sub_u32 {thr}, v4, {thr}")
    ONE, HALF = g.vr("ONE", 4), g.vr("HALF", 2)
    for i in range(4): g(f"v_mov_b32 {ONE[i]}, 0x3f803f80")
    for i in range(2): g(f"v_mov_b32 {HALF[i]}, 0x3f003f00")
    g("s_mov_b32 s20, 0x3e0293ee"); g("s_mov_b32 s21, 0xff800000")
    g("s_lshl_b32 s17, s23, 18"); g("s_lshl_b32 s18, s24, 12")
    g("s_add_u32 s17, s17, s18"); g(f"s_add_u32 s17, s17, {WS_O}")
    SX = {}
    for Tq in range(2):
        S0, S1 = g.vr("S0", 4), g.vr("S1", 4)
        SX[Tq] = (S0, S1)
        for tt_ in range(4):
            z = lambda D: "0" if tt_ == 0 else str(D)
            g(f"{MF32} {S0}, {K[(0,tt_)]}, {Q[(Tq,tt_)]}, {z(S0)}")
            if Tq == 1: g(f"{MF32} {S1}, {K[(1,tt_)]}, {Q[(1,tt_)]}, {z(S1)}")
        SD = S0 if Tq == 0 else S1
        ninf = g.vr("ninf")
        g(f"v_mov_b32 {ninf}, s21")
        for j in range(4):
            g(f"v_cmp_le_i32 vcc, {j}, {thr}")
            g(f"v_cndmask_b32 {SD[j]}, {ninf}, {SD[j]}, vcc")
    g.raw("WAITREC")
    kraw = [g.vr(f"kr{w}", 2) for w in range(4)]
    h8 = g.vr("h8")
    g(f"v_lshrrev_b32 {h8}, 1, v3")
    for w in range(4): g(f"buffer_load_dwordx2 {kraw[w]}, {h8}, {SRD}, s14 offen offset:{w*512}{SC}")
    VM = [g.vr(f"VM{w}", 4) for w in range(4)]
    for w in range(4): g(f"buffer_load_dwordx4 {VM[w]}, v3, {SRD}, s15 offen offset:{w*1024}{SC}")
    wa, ra, tt = g.vr("wa"), g.vr("ra"), g.vr("tt")
    g(f"s_mul_i32 s16, {s(sWAVE)}, {2*HS}"); g(f"s_add_u32 s16, s16, {lds0}")
    g(f"v_and_b32 {wa}, 1, v5"); g(f"v_mul_u32_u24 {wa}, {HS}, {wa}")
    g(f"v_lshrrev_b32 {tt}, 1, v5"); g(f"v_lshl_add_u32 {tt}, v4, 1, {tt}")
    g(f"v_lshl_add_u32 {wa}, {tt}, 3, {wa}"); g(f"v_add_u32 {wa}, s16, {wa}")
    for w in range(4): g(f"ds_write_b64 {wa}, {kraw[w]} offset:{w*256}")
    g(f"v_and_b32 {ra}, 1, v2"); g(f"v_mul_u32_u24 {ra}, {HS}, {ra}")
    g(f"v_lshrrev_b32 {tt}, 2, v4"); g(f"v_lshl_add_u32 {tt}, v5, 2, {tt}")
    g(f"v_lshl_add_u32 {ra}, {tt}, 3, {ra}"); g(f"v_add_u32 {ra}, s16, {ra}")
    g("s_waitcnt lgkmcnt(0)")
    KM = [g.vr(f"KM{t}", 4) for t in range(4)]
    for t in range(4):
        for u in range(2): g(f"ds_read_b64_tr_b16 {KM[t][2*u:2*u+2]}, {ra} offset:{(32*t+16*u)*8}")
    for Tq in range(2):
        SM = g.vr("SM", 4); S0, S1 = SX[Tq]
        for t in range(4):
            g(f"{MF32} {SM}, {KM[t]}, {Q[(Tq,t)]}, {'0' if t == 0 else SM}")
        vals = [S0[j] for j in range(4)] + ([S1[j] for j in range(4)] if Tq == 1 else []) + [SM[j] for j in range(4)]
        m_, u_ = g.vr("m"), g.vr("u")
        g(f"v_max3_f32 {m_}, {vals[0]}, {vals[1]}, {vals[2]}")
        k = 3
        while k < len(vals):
            if k + 1 < len(vals): g(f"v_max3_f32 {m_}, {m_}, {vals[k]}, {vals[k+1]}"); k += 2
            else: g(f"v_max_f32 {m_}, {m_}, {vals[k]}"); k += 1
        for sw in ("32", "16"):
            g(f"v_mov_b32 {u_}, {m_}"); g(f"v_permlane{sw}_swap_b32 {m_}, {u_}"); g(f"v_max_f32 {m_}, {m_}, {u_}")
        g(f"v_mul_f32 {m_}, s20, {m_}")
        for x in vals: g(f"v_fma_f32 {x}, {x}, s20, -{m_}")
        for x in vals: g(f"v_exp_f32 {x}, {x}")
        P12, PM = g.vr("P12", 4), g.vr("PM", 2)
        g(f"v_cvt_pk_bf16_f32 {P12[0]}, {S0[0]}, {S0[1]}"); g(f"v_cvt_pk_bf16_f32 {P12[1]}, {S0[2]}, {S0[3]}")
        if Tq == 1:
            g(f"v_cvt_pk_bf16_f32 {P12[2]}, {S1[0]}, {S1[1]}"); g(f"v_cvt_pk_bf16_f32 {P12[3]}, {S1[2]}, {S1[3]}")
        else:
            g(f"v_mov_b32 {P12[2]}, 0"); g(f"v_mov_b32 {P12[3]}, 0")
        g(f"v_cvt_pk_bf16_f32 {PM[0]}, {SM[0]}, {SM[1]}"); g(f"v_cvt_pk_bf16_f32 {PM[1]}, {SM[2]}, {SM[3]}")
        L = g.vr("L", 4)
        g(f"{MF32} {L}, {ONE}, {P12}, 0")
        rl = g.vr("rl")
        O = {}
        for w in range(4):
            for par in range(2):
                O[(w, par)] = g.vr(f"O{w}{par}", 4)
                g(f"{MF32} {O[(w,par)]}, {V[(w,par)]}, {P12}, 0")
        g(f"{MF16} {L}, {HALF}, {PM}, {L}")
        for w in range(4):
            for par in range(2):
                g(f"{MF16} {O[(w,par)]}, {VM[w][2*par:2*par+2]}, {PM}, {O[(w,par)]}")
        g(f"v_rcp_f32 {rl}, {L[0]}")
        for w in range(4):
            pk = g.vr("pk", 4)
            for j in range(4):
                g(f"v_mul_f32 {O[(w,0)][j]}, {O[(w,0)][j]}, {rl}")
                g(f"v_mul_f32 {O[(w,1)][j]}, {O[(w,1)][j]}, {rl}")
                g(f"v_cvt_pk_bf16_f32 {pk[j]}, {O[(w,0)][j]}, {O[(w,1)][j]}")
            g(f"buffer_store_dwordx4 {pk}, v3, {SRD}, s17 offen offset:{w*1024}{st}")
        if Tq == 0: g(f"s_add_u32 s17, s17, {128*1024}")
    class P2:
        pass
    orig_raw = p.raw
    def raw_hook(text):
        if text == "WAITREC":
            p.raw = orig_raw
            p("s_add_u32 s26, s23, 1")
            p("s_cmp_eq_u32 s23, 63"); p(f"s_cselect_b32 s27, 1, 0"); p("s_cselect_b32 s26, 32, s26")
            wait_ge(p, "ws", (F_REC, "s27"), "s26")
            p.raw = raw_hook
        else: orig_raw(text)
    p.raw = raw_hook
    g.finish()
    p.raw = orig_raw
    sig()
```

```python
import sys
sys.path.insert(0, "gen")
from asmlib import *
from layout import *
from sync import *
import rec, tasks, gemm2
import post as postm
NAME = "adaLN_cond__memory_aug_recurrent_mem_tr__dense_activation_gelu__prompt"
HEADER = open("cdna_kernels/" + NAME + ".s.ref").read().split("; Override launch geometry")[0]
NWORK = 224
sTASK = 95

def gen_mega(name, opt=None, post=True):
    opt = opt or {}
    THR = 33 if opt.get("force_slow") else 32
    p = Prog()
    p.raw(f".p2align 8\n.type {name},@function\n{name}:")
    p("s_cmp_ge_u32 s2, 256"); p(f"s_cbranch_scc1 L_{name}_exit")
    p(f"s_load_dwordx2 {SDBG}, s[0:1], {KA['dbg']}")
    p(f"s_load_dwordx2 s[4:5], s[0:1], {KA['ws']}")
    p("s_getreg_b32 s3, hwreg(HW_REG_XCC_ID)")
    p("s_and_b32 s3, s3, 15")
    if opt.get("fake_xcc"): p(f"s_and_b32 s3, s2, {opt['fake_xcc']-1}")
    p("v_lshrrev_b32 v1, 6, v0")
    p(f"v_readfirstlane_b32 {s(sWAVE)}, v1")
    p("s_waitcnt lgkmcnt(0)")
    p(f"s_mov_b32 s6, {WS_BYTES}"); p("s_mov_b32 s7, 0x00020000")
    p(f"s_cmp_lg_u32 {s(sWAVE)}, 0")
    p(f"s_cbranch_scc1 L_{name}_el_wait")
    p("s_mov_b64 exec, 1")
    p("v_mov_b32 v2, 1")
    p("s_lshl_b32 s10, s3, 2"); p("v_mov_b32 v3, s10")
    p(f"global_atomic_add v4, v3, v2, {SDBG} sc0")
    p("s_waitcnt vmcnt(0)")
    p(f"v_mov_b32 v3, {D_TOTAL*4}")
    p(f"global_atomic_add v5, v3, v2, {SDBG} sc0")
    p("s_waitcnt vmcnt(0)")
    p("v_readfirstlane_b32 s10, v4")
    p("s_lshl_b32 s14, s3, 8"); p("s_or_b32 s14, s14, s10")
    p("s_cmp_lg_u32 s3, 0"); p(f"s_cbranch_scc1 L_{name}_el_other")
    p(f"s_cmp_lt_u32 s10, 32"); p(f"s_cbranch_scc1 L_{name}_el_pub")
    p.label(f"L_{name}_el_other")
    p(f"s_mov_b32 s11, {SPIN}")
    p.label(f"L_{name}_el_spin")
    p(f"v_mov_b32 v3, {D_TOTAL*4}")
    p(f"global_load_dword v5, v3, {SDBG} sc1")
    p("s_waitcnt vmcnt(0)")
    p("v_mov_b32 v3, 0")
    p(f"global_load_dword v4, v3, {SDBG} sc1")
    p("s_waitcnt vmcnt(0)")
    p("v_readfirstlane_b32 s12, v4"); p("v_readfirstlane_b32 s13, v5")
    p(f"s_cmp_ge_u32 s12, 32"); p(f"s_cbranch_scc1 L_{name}_el_work")
    p("s_cmp_ge_u32 s13, 256"); p(f"s_cbranch_scc1 L_{name}_el_fb")
    p("s_sleep 2")
    p("s_sub_u32 s11, s11, 1"); p(f"s_cbranch_scc0 L_{name}_el_spin")
    p("s_mov_b32 s10, 0x1000"); p(f"s_branch L_{name}_el_pub")
    p.label(f"L_{name}_el_fb")
    p(f"v_mov_b32 v3, {D_FB*4}")
    p(f"global_atomic_add v4, v3, v2, {SDBG} sc0")
    p("s_waitcnt vmcnt(0)")
    p("v_readfirstlane_b32 s10, v4")
    p("s_add_u32 s10, s10, s12")
    p("s_cmp_lt_u32 s10, 32"); p(f"s_cbranch_scc1 L_{name}_el_pub")
    p.label(f"L_{name}_el_work")
    p(f"v_mov_b32 v3, {D_WORK*4}")
    p(f"global_atomic_add v4, v3, v2, {SDBG} sc0")
    p("s_waitcnt vmcnt(0)")
    p("v_readfirstlane_b32 s10, v4")
    p("s_add_u32 s10, s10, 0x100")
    p.label(f"L_{name}_el_pub")
    p("v_mov_b32 v4, s10"); p("v_mov_b32 v5, s14"); p("v_mov_b32 v3, 0")
    p("ds_write_b64 v3, v[4:5]")
    p("s_mov_b64 exec, -1")
    p.label(f"L_{name}_el_wait")
    p("s_waitcnt vmcnt(0) lgkmcnt(0)")
    p("s_barrier")
    p("v_mov_b32 v3, 0")
    p("ds_read_b64 v[4:5], v3")
    p("s_waitcnt lgkmcnt(0)")
    p("v_readfirstlane_b32 s8, v4")
    p("v_readfirstlane_b32 s89, v5")
    p("s_barrier")
    p.flush_state()
    p("s_cmp_lt_u32 s8, 32"); p(f"s_cbranch_scc1 L_{name}_rec")
    p("s_cmp_ge_u32 s8, 0x1000"); p(f"s_cbranch_scc1 L_{name}_exit")
    p(f"s_sub_u32 {s(sTASK)}, s8, 0x100")
    p("v_accvgpr_write_b32 a255, v0")
    def trace(slot_sreg_expr_code, tag):
        if not opt.get("trace"): return
        p.raw("    s_memrealtime s[100:101]")
        p("s_waitcnt lgkmcnt(0)")
        p(f"s_cmp_lg_u32 {s(sWAVE)}, 0"); p(f"s_cbranch_scc1 L_{name}_tr_{tag}")
        slot_sreg_expr_code()
        p("v_mov_b32 v240, s96"); p("v_mov_b32 v241, s98"); p("v_mov_b32 v242, s100"); p(f"v_mov_b32 v243, s88")
        p(f"s_lshl_b32 s88, s88, 4"); p(f"s_add_u32 s88, s88, {WS_DBG + (1<<20)}")
        p("v_mov_b32 v244, 0"); p("s_mov_b64 exec, 1")
        p("buffer_store_dwordx4 v[240:243], v244, s[4:7], s88 offen")
        p("s_mov_b64 exec, -1")
        p.label(f"L_{name}_tr_{tag}")
        p.raw("    s_memrealtime s[96:97]")
    def fin():
        p("s_waitcnt vmcnt(0) lgkmcnt(0)"); p("s_barrier"); p.flush_state()
        p("v_accvgpr_read_b32 v0, a255")
    if opt.get("trace"): p.raw("    s_memrealtime s[96:97]"); p.raw("    s_mov_b32 s98, 0")
    p(f"s_cmp_lt_u32 {s(sTASK)}, 48"); p(f"s_cbranch_scc1 L_{name}_t_mod")
    p(f"s_cmp_lt_u32 {s(sTASK)}, 176"); p(f"s_cbranch_scc1 L_{name}_t_ln1")
    p(f"s_branch L_{name}_ph2")
    p.label(f"L_{name}_t_mod")
    p(f"s_mov_b32 s2, {s(sTASK)}")
    tasks.body_mod(p, name + "_mod"); fin()
    trace(lambda: p(f"s_mov_b32 s88, {s(sTASK)}"), "mod")
    p(f"s_branch L_{name}_ph2")
    p.label(f"L_{name}_t_ln1")
    p.flush_state()
    p(f"s_sub_u32 s2, {s(sTASK)}, 48")
    tasks.body_ln(p, name + "_ln1", 1); fin()
    trace(lambda: p(f"s_mov_b32 s88, {s(sTASK)}"), "ln1")
    p.label(f"L_{name}_ph2")
    p.flush_state()
    wait_ge(p, "dbg", D_TOTAL, 256)
    wait_ge(p, "dbg", D_MOD, 48)
    p("v_and_b32 v2, 63, v0"); p("v_lshlrev_b32 v3, 2, v2"); p("v_min_u32 v3, 28, v3")
    p(f"global_load_dword v4, v3, {SDBG} sc1")
    p("s_waitcnt vmcnt(0)")
    p("v_cmp_ne_u32 vcc, 32, v4")
    p("s_nop 4")
    p("s_cmp_eq_u64 vcc, 0")
    p("s_lshr_b32 s8, s89, 8"); p("s_and_b32 s9, s89, 0xff")
    p("s_sub_u32 s8, s8, 1"); p("s_lshl_b32 s8, s8, 5"); p("s_add_u32 s8, s8, s9")
    p("s_cmp_eq_u64 vcc, 0")
    p(f"s_cselect_b32 {s(sTASK)}, s8, {s(sTASK)}")
    p("s_cselect_b32 s80, 1, 0")
    if opt.get("force_slow") or opt.get("fake_xcc"): pass
    p(f"s_lshr_b32 s84, {s(sTASK)}, 5"); p(f"s_and_b32 s85, {s(sTASK)}, 31")
    p("s_cmp_lt_u32 s84, 4"); p("s_cselect_b32 s86, 5, 4")
    p.label(f"L_{name}_qloop")
    p("s_mul_i32 s8, s86, 22"); p("s_cmp_ge_u32 s85, s8"); p(f"s_cbranch_scc1 L_{name}_ph3")
    p("s_mov_b32 s9, 0x40000000"); p("s_cmp_eq_u32 s86, 5"); p("s_cselect_b32 s9, 0x33333334, s9")
    p("s_mul_hi_u32 s10, s85, s9")
    p("s_mul_i32 s11, s10, s86"); p("s_sub_u32 s11, s85, s11"); p("s_mul_i32 s11, s11, 7"); p("s_add_u32 s11, s11, s84")
    p(f"s_cmp_ge_u32 s10, 9"); p(f"s_cbranch_scc1 L_{name}_q_full")
    p(f"s_cmp_ge_u32 s10, 6"); p(f"s_cbranch_scc1 L_{name}_q_q")
    p("s_lshr_b32 s12, s10, 1"); p("s_lshl_b32 s2, s12, 5"); p("s_add_u32 s2, s2, s11"); p("s_mov_b32 s87, s2")
    p("s_bitcmp1_b32 s10, 0"); p(f"s_cbranch_scc1 L_{name}_q_v")
    p("s_mov_b32 s88, 0"); p(f"s_branch L_{name}_q_kq")
    p.label(f"L_{name}_q_q")
    p("s_sub_u32 s12, s10, 6"); p("s_lshl_b32 s2, s12, 5"); p("s_add_u32 s2, s2, s11"); p("s_mov_b32 s87, s2"); p("s_mov_b32 s88, 1")
    p.label(f"L_{name}_q_kq")
    p.flush_state()
    gemm2.body_gemm(p, name + "_kq", "kq"); fin()
    p(f"s_branch L_{name}_q_next")
    p.label(f"L_{name}_q_v")
    p.flush_state()
    gemm2.body_gemm(p, name + "_v", "v"); fin()
    p(f"s_branch L_{name}_q_next")
    p.label(f"L_{name}_q_full")
    p("s_sub_u32 s12, s10, 6"); p("s_lshl_b32 s2, s12, 5"); p("s_add_u32 s2, s2, s11"); p("s_mov_b32 s87, s2")
    p.flush_state()
    gemm2.body_gemm(p, name + "_qkv", "qkv"); fin()
    p.label(f"L_{name}_q_next")
    trace(lambda: p("s_add_u32 s88, s87, 176"), "qkv")
    p("s_add_u32 s85, s85, 32")
    p(f"s_branch L_{name}_qloop")
    p.label(f"L_{name}_ph3")
    p.flush_state()
    p(f"s_lshr_b32 s84, {s(sTASK)}, 5"); p(f"s_and_b32 s85, {s(sTASK)}, 31")
    def tr(stage):
        trace(lambda: (p("s_mul_i32 s88, s81, 5"), p(f"s_add_u32 s88, s88, {stage}"), p("s_lshl_b32 s88, s88, 5"), p("s_add_u32 s88, s88, s83"), p("s_add_u32 s88, s88, 688")), f"p{stage}_{tr.n}")
        tr.n += 1
    tr.n = 0
    p("s_cmp_eq_u32 s80, 1"); p(f"s_cbranch_scc1 L_{name}_postf")
    postm.gen_post(p, name + "_ps", " sc1", fin, tr)
    p(f"s_branch L_{name}_exit")
    p.label(f"L_{name}_postf")
    postm.gen_post(p, name + "_pf", "", fin, tr)
    p.label(f"L_{name}_exit")
    p("s_endpgm")
    p.label(f"L_{name}_rec")
    p.flush_state()
    rec.gen_rec(name + "_r", opt=opt, prog=p, stamps=bool(opt.get("stamps")))
    return p

def build(path, opt=None):
    n = NAME + "_kernel"
    p = gen_mega(n, opt)
    out = HEADER + f"; @launch grid=(256,1,1) block=(256,1,1) lds={max(rec.LDS_BYTES, postm.POST_LDS)}\n"
    out += '.amdgcn_target "amdgcn-amd-amdhsa--gfx950"\n.text\n' + f".globl {n}\n" + p.text() + kd(n).replace(".end_amdhsa_kernel\n.text\n", ".end_amdhsa_kernel\n")
    open(path, "w").write(out)
    return p

if __name__ == "__main__":
    base = {"d1": 12, "d2": 6}
    build("mega_st.s", dict(base, stamps=1))
    import sync
    sync.TRACE = True
    build("mega_tr.s", dict(base, trace=1))
    sync.TRACE = False
    p = build("mega.s", base)
    print(p.stats)
```

```python
from asmlib import *
from layout import *
from sync import D_RINIT, D_MOD, D_ABORT, F_KV, F_REC, F_RECF

L_BUF  = 0
L_MEM  = 32768
L_OI   = 40960
HS     = 1088
L_QI   = 45056
L_KI   = L_QI + 2176
L_SEL  = 49664
L_ONE, L_HALF, L_ZERO = L_SEL + 1024, L_SEL + 2048, L_SEL + 3072
L_WL   = L_SEL + 4096
LDS_BYTES = L_WL + 4 * 24576

vL16, vIdx, vA, vQw, vQr, vH1s, vH1l, vPub, vBuf = range(9)
RES = 96
AWV, AWO = 0, 128

sH, sW, sStep, sTag = 8, 9, 10, 11
sMpoll, sMpub, sMrst = 12, 13, 14
sSpin = 15
sPst = 16
sPld = 18
sKX, sVX, sKM, sVM = 24, 25, 26, 27
sM0K, sM0V = 28, 29
sFirst = 30
sWL = 31
sPubMask = 32
sO = 34
sC = 38
sSRDW = 40
sT0, sT1, sT2, sT3 = 44, 45, 46, 47
sW2k = 50
sKVok = 51
sMrst2 = sMrst
SPIN_MAX = 100000
NST = 16

def wl_off(t, m): return (t * 2 + m) * 2048
def wres(t, m):
    assert t >= 6
    return RES + ((t - 6) * 2 + m) * 8
def mem_col_scalar(j, d):
    return 128 * (j // 8) + 64 * ((j // 4) % 2) + 8 * (j % 4) + 32 * (d % 2) + 2 * ((d % 4) // 2)

def gen_rec(name, stamps=False, st_mod="", nsteps=64, opt=None, prog=None):
    opt = opt or {}
    mega = prog is not None
    NHEAD_THR = 33 if opt.get("force_slow") else 32
    p = prog if mega else Prog()
    SRD = "s[4:7]"
    DS = " sc1" if mega else ""
    if not mega: p.raw(f".p2align 8\n.type {name},@function\n{name}:")
    if mega:
        p(f"s_load_dwordx2 s[56:57], s[0:1], {KA['dbg']}")
    else:
        p(f"s_cmp_ge_u32 s2, 256")
        p(f"s_cbranch_scc1 L_{name}_end")
        p(f"s_load_dwordx2 s[56:57], s[0:1], {KA['dbg']}")
        p("s_getreg_b32 s3, hwreg(HW_REG_XCC_ID)")
        p("s_and_b32 s3, s3, 15")
        if opt.get("fake_xcc"): p(f"s_and_b32 s3, s2, {opt['fake_xcc']-1}")
        p("v_lshrrev_b32 v1, 6, v0")
        p("v_readfirstlane_b32 s9, v1")
        p("s_waitcnt lgkmcnt(0)")
        p("s_cmp_lg_u32 s9, 0")
        p(f"s_cbranch_scc1 L_{name}_el_wait")
        p("s_mov_b64 exec, 1")
        p("v_mov_b32 v2, 1")
        p("s_lshl_b32 s10, s3, 2")
        p("v_mov_b32 v3, s10")
        p("global_atomic_add v4, v3, v2, s[56:57] sc0")
        p("s_waitcnt vmcnt(0)")
        p("v_mov_b32 v3, 64")
        p("global_atomic_add v5, v3, v2, s[56:57] sc0")
        p("s_waitcnt vmcnt(0)")
        p("v_readfirstlane_b32 s10, v4")
        p("s_cmp_lg_u32 s3, 0")
        p(f"s_cbranch_scc1 L_{name}_el_other")
        p(f"s_cmp_lt_u32 s10, {NHEAD_THR}")
        p(f"s_cbranch_scc1 L_{name}_el_pub")
        p.label(f"L_{name}_el_other")
        p(f"s_mov_b32 s11, {SPIN_MAX}")
        p.label(f"L_{name}_el_spin")
        p("v_mov_b32 v3, 64")
        p("global_load_dword v5, v3, s[56:57] sc1")
        p("s_waitcnt vmcnt(0)")
        p("v_mov_b32 v3, 0")
        p("global_load_dword v4, v3, s[56:57] sc1")
        p("s_waitcnt vmcnt(0)")
        p("v_readfirstlane_b32 s12, v4")
        p("v_readfirstlane_b32 s13, v5")
        p("s_mov_b32 s10, -1")
        p(f"s_cmp_ge_u32 s12, {NHEAD_THR}")
        p(f"s_cbranch_scc1 L_{name}_el_pub")
        p("s_cmp_ge_u32 s13, 256")
        p(f"s_cbranch_scc1 L_{name}_el_fb")
        p("s_sleep 8")
        p("s_sub_u32 s11, s11, 1")
        p(f"s_cbranch_scc0 L_{name}_el_spin")
        p(f"s_branch L_{name}_el_pub")
        p.label(f"L_{name}_el_fb")
        p("v_mov_b32 v3, 68")
        p("global_atomic_add v4, v3, v2, s[56:57] sc0")
        p("s_waitcnt vmcnt(0)")
        p("v_readfirstlane_b32 s10, v4")
        p("s_add_u32 s10, s10, s12")
        p.label(f"L_{name}_el_pub")
        p("v_mov_b32 v2, s10")
        p("v_mov_b32 v3, 0")
        p("ds_write_b32 v3, v2")
        p("s_mov_b64 exec, -1")
        p.label(f"L_{name}_el_wait")
        p("s_waitcnt vmcnt(0) lgkmcnt(0)")
        p("s_barrier")
        p("v_mov_b32 v3, 0")
        p("ds_read_b32 v2, v3")
        p("s_waitcnt lgkmcnt(0)")
        p(f"v_readfirstlane_b32 {s(sH)}, v2")
        p("s_barrier")
        p(f"s_cmp_ge_u32 {s(sH)}, 32")
        p(f"s_cbranch_scc1 L_{name}_end")
        p.flush_state()
    if not stamps: p.raw("    s_memrealtime s[96:97]")
    p(f"s_load_dwordx2 s[4:5], s[0:1], {KA['ws']}")
    p(f"s_load_dwordx2 s[60:61], s[0:1], {KA['Wq']}")
    p(f"s_load_dwordx2 s[62:63], s[0:1], {KA['Wk']}")
    p(f"s_load_dwordx2 s[64:65], s[0:1], {KA['Wv']}")
    p(f"s_load_dwordx2 s[66:67], s[0:1], {KA['Wo']}")
    p(f"s_load_dwordx2 s[68:69], s[0:1], {KA['mem0']}")
    p(f"v_mov_b32 v11, v0")
    p(f"v_lshrrev_b32 v12, 6, v0")
    p(f"v_readfirstlane_b32 {s(sW)}, v12")
    p(f"v_and_b32 v13, 63, v0")
    p(f"s_waitcnt lgkmcnt(0)")
    p(f"s_mov_b32 s6, {WS_BYTES}")
    p(f"s_mov_b32 s7, 0x00020000")
    p(f"v_and_b32 v14, 15, v13")
    p(f"v_lshrrev_b32 v15, 4, v13")
    p(f"v_lshlrev_b32 {v(vL16)}, 4, v13")
    p(f"v_mov_b32 v16, 0x8888")
    p(f"v_mov_b32 v17, 0xdddd")
    p(f"v_cmp_gt_u32 vcc, 8, v14")
    p(f"v_cndmask_b32 {v(vIdx)}, v17, v16, vcc")
    p(f"v_and_b32 v16, 7, v14")
    p(f"v_lshlrev_b32 v16, 4, v16")
    p(f"v_lshl_add_u32 {v(vA)}, v15, 7, v16")
    p(f"s_mul_i32 {s(sWL)}, {s(sW)}, 24576")
    p(f"s_add_u32 {s(sWL)}, {s(sWL)}, {L_WL}")
    p(f"v_and_b32 v16, 1, v15")
    p(f"v_mul_u32_u24 v16, {HS}, v16")
    p(f"v_lshrrev_b32 v17, 1, v15")
    p(f"v_lshl_add_u32 v17, v14, 1, v17")
    p(f"s_lshl_b32 {s(sT0)}, {s(sW)}, 5")
    p(f"v_add_u32 v17, {s(sT0)}, v17")
    p(f"v_lshl_add_u32 v16, v17, 3, v16")
    p(f"v_add_u32 {v(vQw)}, {L_QI}, v16")
    p(f"v_and_b32 v16, 1, v13")
    p(f"v_mul_u32_u24 v16, {HS}, v16")
    p(f"v_lshrrev_b32 v17, 2, v14")
    p(f"v_lshl_add_u32 v17, v15, 2, v17")
    p(f"v_lshl_add_u32 v16, v17, 3, v16")
    p(f"v_add_u32 {v(vQr)}, {L_QI}, v16")
    p(f"v_lshrrev_b32 v16, 2, v14")
    p(f"s_lshl_b32 {s(sT0)}, {s(sW)}, 3")
    p(f"v_add_u32 v16, {s(sT0)}, v16")
    p(f"v_lshlrev_b32 v16, 13, v16")
    p(f"v_lshl_add_u32 v16, v15, 11, v16")
    p(f"v_and_b32 v17, 3, v14")
    p(f"v_lshl_add_u32 v16, v17, 4, v16")
    p(f"s_and_b32 {s(sT0)}, {s(sH)}, 1")
    p(f"s_lshl_b32 {s(sT0)}, {s(sT0)}, 10")
    p(f"s_lshr_b32 {s(sT1)}, {s(sH)}, 1")
    p(f"s_lshl_b32 {s(sT1)}, {s(sT1)}, 6")
    p(f"s_add_u32 {s(sT0)}, {s(sT0)}, {s(sT1)}")
    p(f"v_add_u32 {v(vH1s)}, {s(sT0)}, v16")
    p(f"s_lshl_b32 {s(sT0)}, {s(sH)}, 13")
    p(f"s_lshl_b32 {s(sT1)}, {s(sW)}, 11")
    p(f"s_add_u32 {s(sT0)}, {s(sT0)}, {s(sT1)}")
    p(f"v_add_u32 {v(vH1l)}, {s(sT0)}, {v(vL16)}")
    p(f"v_lshlrev_b32 v16, 4, v15")
    p(f"v_and_b32 v17, 3, v13")
    p(f"v_lshl_add_u32 v16, v17, 2, v16")
    p(f"s_lshr_b32 {s(sT0)}, {s(sH)}, 1")
    p(f"s_lshl_b32 {s(sT0)}, {s(sT0)}, 9")
    p(f"s_and_b32 {s(sT1)}, {s(sH)}, 1")
    p(f"s_lshl_b32 {s(sT1)}, {s(sT1)}, 8")
    p(f"s_add_u32 {s(sT0)}, {s(sT0)}, {s(sT1)}")
    p(f"s_lshr_b32 {s(sT1)}, {s(sW)}, 1")
    p(f"s_lshl_b32 {s(sT1)}, {s(sT1)}, 7")
    p(f"s_add_u32 {s(sT0)}, {s(sT0)}, {s(sT1)}")
    p(f"s_and_b32 {s(sT1)}, {s(sW)}, 1")
    p(f"s_lshl_b32 {s(sT1)}, {s(sT1)}, 6")
    p(f"s_add_u32 {s(sT0)}, {s(sT0)}, {s(sT1)}")
    p(f"v_add_u32 {v(vPub)}, {s(sT0)}, v16")
    p(f"v_mov_b32 {v(vBuf)}, {v(vL16)}")
    p(f"v_and_b32 v16, 3, v14")
    p(f"v_lshrrev_b32 v17, 2, v14")
    p(f"v_lshrrev_b32 v19, 1, v17")
    p(f"v_lshl_add_u32 v19, v16, 1, v19")
    p(f"v_and_b32 v17, 1, v17")
    p(f"v_lshlrev_b32 v17, 4, v17")
    p(f"v_mov_b32 v20, 0x3f80")
    p(f"v_lshlrev_b32 v20, v17, v20")
    for i in range(4):
        p(f"v_cmp_eq_u32 vcc, {i}, v19")
        p(f"v_cndmask_b32 {v(24+i)}, 0, v20, vcc")
    p(f"v_add_u32 v21, {L_SEL}, {v(vL16)}")
    p(f"ds_write_b128 v21, v[24:27]")
    for k_, val in enumerate((0x3f803f80, 0x3f003f00, 0)):
        for i in range(4): p(f"v_mov_b32 {v(28+i)}, {hex(val)}")
        p(f"ds_write_b128 v21, v[28:31] offset:{1024*(k_+1)}")
    p(f"s_lshr_b32 {s(sT1)}, {s(sH)}, 2")
    for q2 in range(2):
        p(f"s_add_u32 {s(sT0)}, {s(sH)}, {q2}")
        p(f"s_and_b32 {s(sT0)}, {s(sT0)}, 1")
        p(f"s_lshl_b32 {s(sT0)}, {s(sT0)}, 15")
        p(f"s_add_u32 {s(sPst+q2)}, {s(sT0)}, {WS_P}")
        p(f"s_add_u32 {s(sT0)}, {s(sT1)}, {q2}")
        p(f"s_and_b32 {s(sT0)}, {s(sT0)}, 1")
        p(f"s_lshl_b32 {s(sT0)}, {s(sT0)}, 10")
        p(f"s_add_u32 {s(sPld+q2)}, {s(sT0)}, {WS_P}")
    p(f"s_mov_b32 {s(sC)}, 0x3e0293ee")
    p(f"s_mov_b32 {s(sC+1)}, 0x3e0293ee")
    p(f"s_mov_b32 {s(sPubMask)}, 0x000f000f")
    p(f"s_mov_b32 {s(sPubMask+1)}, 0x000f000f")
    for b in range(1, 4):
        p(f"s_add_u32 {s(sT0)}, {s(sW)}, {b}")
        p(f"s_and_b32 {s(sT0)}, {s(sT0)}, 3")
        p(f"s_lshl_b32 {s(sT0)}, {s(sT0)}, 10")
        p(f"s_add_u32 {s(sO+b-1)}, {s(sT0)}, {L_OI}")
    p(f"s_lshl_b32 {s(sT0)}, {s(sW)}, 10")
    p(f"s_add_u32 {s(sO+3)}, {s(sT0)}, {L_OI}")
    p(f"s_lshl_b32 {s(sT0)}, {s(sH)}, 13")
    p(f"s_lshl_b32 {s(sW2k)}, {s(sW)}, 11")
    p(f"s_add_u32 {s(sT0)}, {s(sT0)}, {s(sW2k)}")
    p(f"s_add_u32 {s(sKX)}, {s(sT0)}, {WS_KX}")
    p(f"s_add_u32 {s(sVX)}, {s(sT0)}, {WS_VX}")
    p(f"s_add_u32 {s(sM0K)}, {s(sW2k)}, {L_BUF}")
    p(f"s_add_u32 {s(sM0V)}, {s(sW2k)}, {L_BUF + 8192}")
    p(f"s_lshl_b32 {s(sT0)}, {s(sH)}, 11")
    p(f"s_lshl_b32 {s(sT1)}, {s(sW)}, 9")
    p(f"s_add_u32 {s(sKM)}, {s(sT0)}, {s(sT1)}")
    p(f"s_lshl_b32 {s(sVM)}, {s(sKM)}, 1")
    p(f"s_add_u32 {s(sVM)}, {s(sVM)}, {WS_VM}")
    p(f"s_add_u32 {s(sKM)}, {s(sKM)}, {WS_KM}")
    p(f"s_mov_b32 {s(sMpub)}, {WS_M + 8192}")
    p(f"s_mov_b32 {s(sMrst)}, {WS_M + 2*8192}")
    p(f"s_mov_b32 {s(sStep)}, 0")
    p(f"s_mov_b32 {s(sTag)}, 0")
    p("s_mov_b32 s58, 0"); p("s_mov_b32 s59, 0")

    dma_list = [
        [f"s_mov_b32 m0, {s(sM0K)}", f"buffer_load_dwordx4 {v(vL16)}, {SRD}, {s(sKX)} offen{DS} lds"],
        [f"buffer_load_dwordx4 {v(vL16)}, {SRD}, {s(sKX)} offen offset:1024{DS} lds", f"s_add_u32 {s(sKX)}, {s(sKX)}, {32*8192}", f"s_xor_b32 {s(sM0K)}, {s(sM0K)}, 16384"],
        [f"s_mov_b32 m0, {s(sM0V)}", f"buffer_load_dwordx4 {v(vL16)}, {SRD}, {s(sVX)} offen{DS} lds"],
        [f"buffer_load_dwordx4 {v(vL16)}, {SRD}, {s(sVX)} offen offset:1024{DS} lds", f"s_add_u32 {s(sVX)}, {s(sVX)}, {32*8192}", f"s_xor_b32 {s(sM0V)}, {s(sM0V)}, 16384"],
    ]
    def set_srd(base, nbytes):
        p(f"s_mov_b32 {s(sSRDW)}, {s(base)}")
        p(f"s_mov_b32 {s(sSRDW+1)}, {s(base+1)}")
        p(f"s_mov_b32 {s(sSRDW+2)}, {nbytes}")
        p(f"s_mov_b32 {s(sSRDW+3)}, 0x00020000")
    SW = s(sSRDW, 4)
    WN = 512 * 32 * 128 * 2
    for i, base in enumerate((60, 62, 64, 66)):
        p(f"s_mov_b32 {s(80+4*i)}, {s(base)}")
        p(f"s_and_b32 {s(81+4*i)}, {s(base+1)}, 0xffff")
        p(f"s_mov_b32 {s(82+4*i)}, {WN}")
        p(f"s_mov_b32 {s(83+4*i)}, 0x00020000")
    SQ, SK, SV, SO = (s(80+4*i, 4) for i in range(4))
    p("v_lshrrev_b32 v16, 3, v13"); p(f"s_and_b32 {s(sT0)}, {s(sW)}, 1"); p(f"s_lshl_b32 {s(sT0)}, {s(sT0)}, 6")
    p(f"v_add_u32 v16, {s(sT0)}, v16"); p("v_lshlrev_b32 v16, 13, v16")
    p("v_and_b32 v17, 7, v13"); p("v_lshl_add_u32 v16, v17, 4, v16")
    p(f"s_lshl_b32 {s(sT0)}, {s(sH)}, 8"); p(f"s_lshr_b32 {s(sT1)}, {s(sW)}, 1"); p(f"s_lshl_b32 {s(sT1)}, {s(sT1)}, 7"); p(f"s_add_u32 {s(sT0)}, {s(sT0)}, {s(sT1)}")
    p(f"v_add_u32 v16, {s(sT0)}, v16")
    p("v_lshlrev_b32 v17, 10, v15"); p("v_lshl_add_u32 v17, v14, 4, v17")
    p(f"s_lshl_b32 {s(sT0)}, {s(sH)}, 17"); p(f"s_lshl_b32 {s(sT1)}, {s(sW)}, 8"); p(f"s_add_u32 {s(sT0)}, {s(sT0)}, {s(sT1)}")
    p(f"v_add_u32 v17, {s(sT0)}, v17")
    p(f"s_lshl_b32 {s(sT2)}, {s(sW)}, 13"); p(f"s_add_u32 {s(sT2)}, {s(sT2)}, {L_BUF}")
    p(f"v_add_u32 v18, {s(sT2)}, {v(vL16)}")
    p(f"v_add_u32 v19, {s(sWL)}, {v(vL16)}")
    p("v_and_b32 v20, 1, v15"); p("v_lshlrev_b32 v20, 2, v20"); p("v_lshrrev_b32 v21, 1, v15"); p("v_add_u32 v20, v20, v21")
    p("v_lshlrev_b32 v20, 7, v20"); p("v_lshl_add_u32 v20, v14, 2, v20")
    p(f"s_lshr_b32 {s(sT0)}, {s(sW)}, 1"); p(f"s_lshl_b32 {s(sT0)}, {s(sT0)}, 14"); p(f"s_and_b32 {s(sT1)}, {s(sW)}, 1"); p(f"s_lshl_b32 {s(sT1)}, {s(sT1)}, 6")
    p(f"s_add_u32 {s(sT0)}, {s(sT0)}, {s(sT1)}"); p(f"s_add_u32 {s(sT0)}, {s(sT0)}, {L_BUF}")
    p(f"v_add_u32 v20, {s(sT0)}, v20")
    p("v_lshlrev_b32 v21, 10, v15"); p("v_lshl_add_u32 v21, v14, 2, v21"); p(f"v_add_u32 v21, {s(sT2)}, v21")
    p(f"s_and_b32 {s(sT0)}, {s(sH)}, 1"); p(f"s_lshl_b32 {s(sT0)}, {s(sT0)}, 7")
    p(f"s_xor_b32 {s(sT1)}, {s(sT0)}, 128")
    p(f"v_add_u32 v22, {s(sT1)}, v21"); p(f"v_add_u32 v21, {s(sT0)}, v21")
    p("s_mov_b32 s20, 0x05040100"); p("s_mov_b32 s21, 0x07060302")
    blocks = {"V0": ("v", 24), "V1": ("v", 56)}
    for i in range(5): blocks[f"R{i}"] = ("v", 96 + 32 * i)
    for i in range(8): blocks[f"A{i}"] = ("a", 32 * i)
    chunks = [("o", b) for b in range(4)] + [("v", c) for c in range(4)] + [(m, c) for c in (3, 2, 1, 0) for m in ("q", "k")]
    def dests(ch):
        k, c = ch
        if k == "o": return {f"A{4 + c}"}
        if k == "v": return {f"A{c}"}
        regs = [wres(t, 0 if k == "q" else 1) for t in range(4*c, 4*c + 4) if t >= 6]
        return {f"R{(r - 96) // 32}" for r in regs}
    buf_of = {}
    free = list(blocks)
    def issue(j):
        k, c = chunks[j]
        kind, base = blocks[buf_of[j]]
        for i in range(8):
            if k == "o":
                if i == 0:
                    p(f"s_add_u32 {s(sT1)}, {s(sW)}, {c}"); p(f"s_and_b32 {s(sT1)}, {s(sT1)}, 3"); p(f"s_lshl_b32 {s(sT1)}, {s(sT1)}, 15")
                p(f"s_add_u32 {s(sT0)}, {s(sT1)}, {4*i*1024}")
                p(f"buffer_load_dwordx4 {R(kind, base + 4*i, 4)}, v17, {SO}, {s(sT0)} offen")
            else:
                p(f"s_mov_b32 {s(sT0)}, {(128*c + 8*i) * 8192}")
                p(f"buffer_load_dwordx4 {R(kind, base + 4*i, 4)}, v16, {dict(q=SQ, k=SK, v=SV)[k]}, {s(sT0)} offen")
    filled = set()
    issued = [0]
    DEPTH = 6
    def try_issue(cur):
        while issued[0] < len(chunks) and issued[0] < cur + DEPTH:
            j = issued[0]
            banned = set(filled)
            for x in range(cur, j + 1): banned |= dests(chunks[x])
            banned |= {buf_of[x] for x in range(cur, j)}
            cand = [b for b in free if b not in banned]
            if not cand: break
            buf_of[j] = cand[0]; issue(j); issued[0] += 1
    TM = 88
    free.remove("V1")
    try_issue(0)
    if mega:
        for i in range(4): p(f"v_mov_b32 {v(88+i)}, -1")
        for sl in range(2):
            p(f"s_mov_b32 {s(sT0)}, {WS_P + sl*262144}")
            for k_ in range(2): p(f"buffer_store_dwordx4 v[88:91], {v(vH1l)}, {SRD}, {s(sT0)} offen offset:{k_*1024} sc1")
        p(f"s_mov_b64 exec, {s(sPubMask,2)}")
        for sl in range(3):
            p(f"s_mov_b32 {s(sT0)}, {WS_M + sl*8192}")
            p(f"buffer_store_dword v88, {v(vPub)}, {SRD}, {s(sT0)} offen sc1")
        p(f"s_mov_b64 exec, -1")
        sent_mark = p.vm_mark()
    set_srd(68, 8 * 512 * 2)
    for it in range(2):
        p(f"v_add_u32 v60, {256*it}, v11")
        p(f"v_and_b32 v61, 7, v60")
        p(f"v_lshrrev_b32 v62, 4, v60")
        p(f"v_bfe_u32 v63, v60, 3, 1")
        p(f"v_lshrrev_b32 v64, 3, v62")
        p(f"v_lshlrev_b32 v64, 7, v64")
        p(f"v_bfe_u32 v65, v62, 2, 1")
        p(f"v_lshl_add_u32 v64, v65, 6, v64")
        p(f"v_and_b32 v65, 3, v62")
        p(f"v_lshl_add_u32 v64, v65, 3, v64")
        p(f"v_add_u32 v64, v64, v63")
        p(f"v_lshlrev_b32 v64, 1, v64")
        p(f"v_lshl_add_u32 v64, v61, 10, v64")
        for m in range(4):
            p(f"buffer_load_ushort {v(68+m)}, v64, {SW}, 0 offen offset:{4*m}")
            p(f"buffer_load_ushort {v(72+m)}, v64, {SW}, 0 offen offset:{64+4*m}")
        for m in range(4):
            p(f"v_lshl_or_b32 {v(68+m)}, {v(72+m)}, 16, {v(68+m)}")
        p(f"v_lshlrev_b32 v60, 4, v60")
        p(f"ds_write_b128 v60, v[68:71] offset:{L_MEM}")

    free.append("V1")
    for cur, ch in enumerate(chunks):
        if cur == 3 and mega:
            saved_ = (list(p.vm), p.vm_total)
            p.vm_wait(sent_mark)
            p("s_barrier")
            p(f"s_cmp_lg_u32 {s(sW)}, 0"); p(f"s_cbranch_scc1 L_{name}_ri")
            p(f"v_mov_b32 v9, {D_RINIT*4}"); p("v_mov_b32 v10, 1"); p("s_mov_b64 exec, 1")
            p("global_atomic_add v9, v10, s[56:57]")
            p("s_mov_b64 exec, -1")
            p.label(f"L_{name}_ri")

            p.vm, p.vm_total = saved_
        try_issue(cur)
        assert cur in buf_of, (cur, ch)
        k, c = ch
        kind, base = blocks[buf_of[cur]]
        p("s_waitcnt lgkmcnt(0)")
        if k != "o" or (cur > 0 and chunks[cur-1][0] != "o"): p("s_barrier")
        for i in range(8): p(f"ds_write_b128 v18, {R(kind, base + 4*i, 4)} offset:{i*1024}")
        del buf_of[cur]; buf_of[cur] = None
        buf_of = {x: y for x, y in buf_of.items() if y is not None}
        p("s_waitcnt lgkmcnt(0)")
        if k != "o": p("s_barrier")
        if k == "o":
            for q in range(4):
                for d in range(8):
                    row = 16 * (d // 4) + d % 4
                    p(f"ds_read_b32 {a(AWO + (c*4 + q)*8 + d)}, v{21 + q//2} offset:{row*256 + (q % 2)*64}")
        elif k == "v":
            for u in (2*c, 2*c + 1):
                for d in range(8):
                    for hl in range(2):
                        row = mem_col_scalar(2 * (2*u + hl) + d // 4, d) - 128 * c
                        p(f"ds_read_b32 {v(24*0 + TM + 2*(d % 4) + hl)}, v20 offset:{row*128}")
                    if d % 4 == 3:
                        for par in range(2):
                            for dd in range(d - 3, d + 1):
                                p(f"v_perm_b32 v23, {v(TM + 2*(dd % 4) + 1)}, {v(TM + 2*(dd % 4))}, {'s20' if par == 0 else 's21'}")
                                p(f"v_accvgpr_write_b32 {a(AWV + (u*2+par)*8 + dd)}, v23")
        else:
            m = 0 if k == "q" else 1
            for t in range(4*c, 4*c + 4):
                for d in range(8):
                    row = mem_col_scalar(2*t + d // 4, d) - 128 * c
                    dst = v(wres(t, m) + d) if t >= 6 else v(TM + d)
                    p(f"ds_read_b32 {dst}, v20 offset:{row*128}")
                if t < 6:
                    for hf in range(2): p(f"ds_write_b128 v19, {v(TM + 4*hf, 4)} offset:{wl_off(t, m) + hf*1024}")
        filled |= dests(ch)
    p("s_waitcnt vmcnt(0) lgkmcnt(0)")
    if not stamps: p.raw("    s_memrealtime s[98:99]")
    p(f"s_mov_b32 {s(sFirst)}, 1")
    def kv_poll(pp, lab):
        pp(f"s_mov_b32 {s(sSpin)}, {SPIN_MAX}")
        pp.label(lab)
        pp(f"v_lshlrev_b32 v9, 3, {v(vL16)}")
        pp(f"v_min_u32 v9, {15*128}, v9")
        pp(f"s_mov_b32 {s(sT2)}, {WS_FLAG + F_KV*128}")
        pp(f"buffer_load_dword v10, v9, {SRD}, {s(sT2)} offen sc1")
        pp("s_waitcnt vmcnt(0)")
        pp("v_cmp_gt_u32 vcc, 64, v10")
        pp("s_nop 4")
        pp(f"s_ff1_i32_b64 {s(sKVok)}, vcc")
        pp(f"s_min_u32 {s(sKVok)}, {s(sKVok)}, 16")
        pp(f"s_cmp_gt_u32 {s(sKVok)}, {s(sT1)}")
        pp(f"s_cbranch_scc1 {lab}_ok")
        pp("s_sleep 2")
        pp(f"s_sub_u32 {s(sSpin)}, {s(sSpin)}, 1")
        pp(f"s_cbranch_scc0 {lab}")
        pp(f"s_branch L_{name}_abort")
        pp.label(lab + "_ok")
    if not mega:
        p("s_barrier")
        for grp in dma_list:
            for x in grp: p(x)
        p("s_waitcnt vmcnt(0)")
        p.flush_state()
    if mega:
        p("s_barrier")
        p(f"s_mov_b32 {s(sSpin)}, {SPIN_MAX}")
        p.label(f"L_{name}_riw")
        p(f"v_mov_b32 v20, {D_RINIT*4}")
        p("global_load_dword v21, v20, s[56:57] sc1")
        p("s_waitcnt vmcnt(0)")
        p("v_readfirstlane_b32 s44, v21")
        p("s_cmp_ge_u32 s44, 32"); p(f"s_cbranch_scc1 L_{name}_riok")
        p(f"s_sub_u32 {s(sSpin)}, {s(sSpin)}, 1"); p(f"s_cbranch_scc0 L_{name}_riw"); p(f"s_branch L_{name}_abort")
        p.label(f"L_{name}_riok")
        p(f"s_mov_b32 {s(sSpin)}, {SPIN_MAX}")
        p.label(f"L_{name}_mw")
        p(f"v_mov_b32 v20, {D_MOD*4}")
        p("global_load_dword v21, v20, s[56:57] sc1")
        p("s_waitcnt vmcnt(0)")
        p("v_readfirstlane_b32 s44, v21")
        p("s_cmp_ge_u32 s44, 48"); p(f"s_cbranch_scc1 L_{name}_mok")
        p(f"s_sub_u32 {s(sSpin)}, {s(sSpin)}, 1"); p(f"s_cbranch_scc0 L_{name}_mw"); p(f"s_branch L_{name}_abort")
        p.label(f"L_{name}_mok")
        p(f"s_mov_b32 {s(sT1)}, 0")
        kv_poll(p, f"L_{name}_kv0")
        for grp in dma_list:
            for x in grp: p(x)
        p("s_waitcnt vmcnt(0)")
        p.flush_state()
    p(f"s_mov_b32 {s(sSpin)}, {SPIN_MAX}")
    p.label(f"L_{name}_mode")
    p("v_mov_b32 v20, 64")
    p("global_load_dword v22, v20, s[56:57] sc1")
    p("s_waitcnt vmcnt(0)")
    p("v_mov_b32 v20, 0")
    p("global_load_dword v21, v20, s[56:57] sc1")
    p("s_waitcnt vmcnt(0)")
    p("v_readfirstlane_b32 s44, v21")
    p("v_readfirstlane_b32 s45, v22")
    p(f"s_cmp_ge_u32 s44, {NHEAD_THR}")
    p(f"s_cbranch_scc1 L_{name}f_preA")
    p("s_cmp_ge_u32 s45, 256")
    p(f"s_cbranch_scc1 L_{name}s_preA")
    p(f"s_sub_u32 {s(sSpin)}, {s(sSpin)}, 1")
    p(f"s_cbranch_scc0 L_{name}_mode")
    p(f"s_branch L_{name}_abort")
    p.flush_state()

    def emit_loop(N, st_mod):
        g = Region(p, list(range(9, 96)))
        def st(k):
            if stamps: g.raw(f"    s_memtime s[{70+2*k}:{71+2*k}]")
        SMF = "v_smfmac_f32_16x16x64_bf16"
        MF32 = "v_mfma_f32_16x16x32_bf16"
        MF16 = "v_mfma_f32_16x16x16_bf16"
        KVS = "" if opt.get("kvplain") else " sc1"
        def dly(n):
            while n > 0:
                k = min(n, 4); g(f"s_nop {4*k-1}"); n -= k
        t0, t1 = g.vr("t0"), g.vr("t1")
        def chk8(Y):
            g(f"v_max3_u32 {t0}, {Y[0]}, {Y[1]}, {Y[2]}")
            g(f"v_max3_u32 {t1}, {Y[3]}, {Y[4]}, {Y[5]}")
            g(f"v_max3_u32 {t0}, {t0}, {Y[6]}, {Y[7]}")
            g(f"v_max_u32 {t0}, {t0}, {t1}")
            g(f"v_cmp_eq_u32 vcc, -1, {t0}")
        def chk8t(Y):
            c4 = g.vr("c4", 4, 1)
            for i in range(4): g(f"v_bitop3_b32 {c4[i]}, {Y[2*i]}, {Y[2*i+1]}, {s(sTag)} bitop3:0x7e")
            g(f"v_or3_b32 {c4[0]}, {c4[0]}, {c4[1]}, {c4[2]}")
            g(f"v_bitop3_b32 {c4[0]}, {c4[0]}, {c4[3]}, 1 bitop3:0xa8")
            g(f"v_cmp_ne_u32 vcc, 0, {c4[0]}")
        g.label(f"L_{N}_top")
        def resets():
            NEG = g.vr("NEG", 1)
            g(f"s_mov_b64 exec, {s(sPubMask,2)}")
            g(f"v_mov_b32 {NEG}, -1")
            g(f"buffer_store_dword {NEG}, {v(vPub)}, {SRD}, {s(sMrst)} offen{st_mod}")
            g(f"s_mov_b64 exec, -1")
        g.label(f"L_{N}_preA")
        g.flush_state()
        wl = g.vr("wl")
        g(f"v_add_u32 {wl}, {s(sWL)}, {v(vL16)}")
        WP = {}
        pre = [(0,0),(0,1),(1,0),(1,1),(2,0),(2,1),(3,0)]
        def prel(lst):
            for f_ in lst:
                WP[f_] = g.vr(f"W{f_[0]}{f_[1]}", 8)
                for hf in range(2):
                    g(f"ds_read_b128 {WP[f_][4*hf:4*hf+4]}, {wl} offset:{wl_off(*f_) + hf*1024}")
        nA = opt.get("preA", 3)
        SEL = g.vr("SEL", 4)
        g(f"ds_read_b128 {SEL}, {v(vL16)} offset:{L_SEL}")
        prel(pre[:nA])
        g(f"s_cmp_eq_u32 {s(sFirst)}, 1")
        g(f"s_cbranch_scc1 L_{N}_pre")
        RD = g.vr("RD", 4)
        d1depth = opt.get("h1depth", 1)
        XS = [g.vr(f"X{i}", 8) for i in range(d1depth)]
        def ld_p(X):
            g(f"buffer_load_dwordx4 {X[0:4]}, {v(vH1l)}, {SRD}, {s(sPld)} offen sc1")
            g(f"buffer_load_dwordx4 {X[4:8]}, {v(vH1l)}, {SRD}, {s(sPld+1)} offen sc1")
        def poll(XS, ld, tag, stag, cnt, use, chk8):
            D = len(XS)
            for i, X in enumerate(XS):
                ld(X)
                if i + 1 < D: dly(stag)
            g.flush_state()
            g.label(f"L_{N}_{tag}p")
            for i, X in enumerate(XS):
                g(f"s_waitcnt vmcnt({2*(D-1)})")
                chk8(X)
                g(f"s_cbranch_vccz L_{N}_{tag}u{i}")
                ld(X)
            g(cnt)
            g(f"s_sub_u32 {s(sSpin)}, {s(sSpin)}, 1")
            g(f"s_cbranch_scc0 L_{N}_{tag}p")
            g(f"s_branch L_{name}_abort")
            for i, X in reversed(list(enumerate(XS))):
                g.label(f"L_{N}_{tag}u{i}")
                g.flush_state()
                use(X)
                if i > 0: g(f"s_branch L_{N}_{tag}ok")
            g.label(f"L_{N}_{tag}ok")
            g.flush_state()
        dly(opt.get("d1", 4))
        g(f"s_mov_b32 {s(sSpin)}, {SPIN_MAX}")
        g("s_waitcnt lgkmcnt(0)")
        def use1(X):
            g(f"{MF32} {RD}, {SEL}, {X[0:4]}, 0")
            g(f"{MF32} {RD}, {SEL}, {X[4:8]}, {RD}")
        poll(XS, ld_p, "h1", opt.get("s1", 10), "s_add_u32 s58, s58, 0x10000", use1, chk8t)
        g("s_nop 3")
        st(12)
        g(f"s_add_u32 {s(sMpoll)}, {s(sMpub)}, {s(sW2k)}")
        g(f"s_xor_b32 {s(sTag)}, {s(sTag)}, 1")
        g(f"s_add_u32 {s(sStep)}, {s(sStep)}, 1")
        for ror in (4, 8):
            g(f"v_add_f32_dpp {RD[0]}, {RD[0]}, {RD[0]} row_ror:{ror} row_mask:0xf bank_mask:0xf")
            g(f"v_add_f32_dpp {RD[1]}, {RD[1]}, {RD[1]} row_ror:{ror} row_mask:0xf bank_mask:0xf")
        g(f"v_cvt_pk_bf16_f32 {RD[0]}, {RD[0]}, {RD[1]}")
        g(f"s_mov_b64 exec, {s(sPubMask,2)}")
        g(f"buffer_store_dword {RD[0]}, {v(vPub)}, {SRD}, {s(sMpub)} offen{st_mod}")
        g(f"s_mov_b64 exec, -1")
        st(13)
        g(f"s_mov_b32 {s(sMpub)}, {s(sMrst)}")
        g(f"s_add_u32 {s(sMrst)}, {s(sMrst)}, 8192")
        g(f"s_cmp_eq_u32 {s(sMrst)}, {WS_M + 3*8192}")
        g(f"s_cselect_b32 {s(sMrst)}, {WS_M}, {s(sMrst)}")
        g(f"s_add_u32 {s(sKM)}, {s(sKM)}, {32*2048}")
        g(f"s_add_u32 {s(sVM)}, {s(sVM)}, {32*4096}")
        g(f"v_xor_b32 {v(vBuf)}, 16384, {v(vBuf)}")
        g.label(f"L_{N}_pre")
        g.flush_state()
        prel(pre[nA:])
        accQ, accK = g.vr("accQ", 4), g.vr("accK", 4)
        g(f"ds_read_b128 {accQ}, {v(vL16)} offset:{L_ZERO}")
        g(f"ds_read_b128 {accK}, {v(vL16)} offset:{L_ZERO}")
        a2 = g.vr("a2")
        g(f"v_and_b32 {a2}, 1, {v(vIdx)}")
        g(f"v_lshl_add_u32 {a2}, {a2}, 9, {v(vA)}")
        ma = g.vr("ma")
        g(f"v_add_u32 {ma}, {s(sW2k)}, {v(vL16)}")
        g(f"s_cmp_eq_u32 {s(sFirst)}, 1")
        g(f"s_mov_b32 {s(sFirst)}, 0")
        g(f"s_cbranch_scc1 L_{N}_e0")
        d2depth = opt.get("h2depth", 1)
        YS = [g.vr(f"Y{i}", 8) for i in range(d2depth)]
        def ld_m(Y):
            g(f"buffer_load_dwordx4 {Y[0:4]}, {v(vL16)}, {SRD}, {s(sMpoll)} offen sc1")
            g(f"buffer_load_dwordx4 {Y[4:8]}, {v(vL16)}, {SRD}, {s(sMpoll)} offen offset:1024 sc1")
        dly(opt.get("d2", 0))
        g(f"s_mov_b32 {s(sSpin)}, {SPIN_MAX}")
        def use2(Y):
            g(f"ds_write_b128 {ma}, {Y[0:4]} offset:{L_MEM}")
            g(f"ds_write_b128 {ma}, {Y[4:8]} offset:{L_MEM+1024}")
        if d1depth > 1:
            g("s_waitcnt vmcnt(1)")
            g.keep(*XS)
        poll(YS, ld_m, "h2", opt.get("s2", 10), "s_add_u32 s59, s59, 1", use2, chk8)
        if d2depth > 1:
            g("s_waitcnt vmcnt(0)")
            g.keep(*YS)
        st(14)
        resets()
        g.label(f"L_{N}_e0")
        if mega:
            g(f"s_add_u32 {s(sT1)}, {s(sStep)}, 1"); g(f"s_lshr_b32 {s(sT1)}, {s(sT1)}, 2"); g(f"s_min_u32 {s(sT1)}, {s(sT1)}, 15")
            g(f"s_cmp_gt_u32 {s(sKVok)}, {s(sT1)}")
            g(f"s_cbranch_scc1 L_{N}_kvok")
            g.raw("KVPOLL " + N)
            g.label(f"L_{N}_kvok")
        g("s_waitcnt lgkmcnt(0)")
        st(15)
        g.raw("DUMP")
        g("s_barrier")
        g.flush_state()
        st(0)
        if stamps: g.raw("    s_memrealtime s[72:73]")
        AF = {}
        def aread(t):
            r = g.vr(f"A{t}", 4)
            g(f"ds_read_b128 {r}, {v(vA)} offset:{L_MEM + t*512}")
            return r
        AV = {}
        def avread(u):
            AV[u] = g.vr(f"AV{u}", 4)
            g(f"ds_read_b128 {AV[u]}, {a2} offset:{L_MEM + u*1024}")
        seq = pre + [(6,0),(6,1),(7,0),(7,1),(3,1)] + [(t, m) for t in range(8, 16) for m in range(2)] + [(4,0),(5,0),(4,1),(5,1)]
        aorder = [0, 1, 2, 3, 6, 7] + list(range(8, 16)) + [4, 5]
        streams = [(3,1),(4,0),(5,0),(4,1),(5,1)]
        LA = 4
        for t in aorder[:LA]: AF[t] = aread(t)
        nextA = [LA]
        WSr = {}
        extra = {}
        def after(pos, fn): extra.setdefault(pos, []).append(fn)
        def nexta():
            if nextA[0] < len(aorder):
                t = aorder[nextA[0]]; AF[t] = aread(t); nextA[0] += 1
        for ps in [1, 3, 5, 8, 10, 13, 15, 17, 19, 21, 23, 25]: after(ps, nexta)
        def stream_half(f_, hf):
            if hf == 0: WSr[f_] = g.vr(f"S{f_[0]}{f_[1]}", 8)
            g(f"ds_read_b128 {WSr[f_][4*hf:4*hf+4]}, {wl} offset:{wl_off(*f_) + hf*1024}")
        spos = opt.get("spos", [(2, 4), (12, 14), (16, 18), (20, 22), (24, 26)])
        for f_, (pa, pb) in zip(streams, spos):
            after(pa, lambda f_=f_: stream_half(f_, 0)); after(pb, lambda f_=f_: stream_half(f_, 1))
        if not opt.get("nodma"):
            for k_, grp in enumerate(dma_list): after(opt.get("dmapos", [0, 6, 7, 9])[k_], lambda grp=grp: [g(x) for x in grp])
        if mega:
            def progress():
                pg = g.vr("pg", 2, 1)
                g(f"s_or_b32 {s(sT2)}, {s(sH)}, {s(sW)}")
                g(f"s_cmp_lg_u32 {s(sT2)}, 0")
                g(f"s_cbranch_scc1 L_{N}_nopg")
                g(f"s_mov_b64 exec, 1")
                g(f"s_mov_b32 {s(sT2)}, {WS_FLAG + F_REC*128}")
                g(f"v_mov_b32 {pg[0]}, 0"); g(f"v_mov_b32 {pg[1]}, {s(sStep)}")
                g(f"buffer_store_dword {pg[1]}, {pg[0]}, {SRD}, {s(sT2)} offen sc1")
                g(f"s_mov_b64 exec, -1")
                g.label(f"L_{N}_nopg")
                g("s_nop 0")
            after(11, progress)
        accV = [g.vr("accV0", 4), g.vr("accV1", 4)]
        after(27, lambda: g(f"ds_read_b128 {accV[0]}, {v(vL16)} offset:{L_ZERO}"))
        after(28, lambda: g(f"ds_read_b128 {accV[1]}, {v(vL16)} offset:{L_ZERO}"))
        after(28, lambda: avread(0)); after(29, lambda: avread(1)); after(30, lambda: avread(2)); after(31, lambda: avread(3))
        for i, f_ in enumerate(seq):
            t, m = f_
            w_ = str(WP[f_]) if f_ in WP else (str(WSr[f_]) if f_ in WSr else v(wres(t, m), 8))
            g(f"{SMF} {accQ if m == 0 else accK}, {AF[t]}, {w_}, {v(vIdx)}")
            for fn in extra.get(i, []): fn()
        st(2)
        KX = {}
        def kxread(T, t):
            KX[(T, t)] = g.vr(f"KX{T}{t}", 4)
            g(f"ds_read_b128 {KX[(T,t)]}, {v(vBuf)} offset:{(T*4 + t)*1024}")
        vseq = [(u, par) for u in range(8) for par in range(2)]
        vpos = [0]
        def vmf(n=1):
            for _ in range(n):
                u, par = vseq[vpos[0]]; vpos[0] += 1
                g(f"{SMF} {accV[par]}, {AV[u]}, {a(AWV + (u*2+par)*8, 8)}, {v(vIdx)}")
        qp, kp = g.vr("qp", 2), g.vr("kp", 2)
        QT = [g.vr(f"QT{t}", 4) for t in range(4)]
        KM = [g.vr(f"KM{t}", 4) for t in range(4)]
        def qtread(t):
            for u in range(2): g(f"ds_read_b64_tr_b16 {QT[t][2*u:2*u+2]}, {v(vQr)} offset:{(32*t + 16*u)*8}")
        def kmread(t):
            for u in range(2): g(f"ds_read_b64_tr_b16 {KM[t][2*u:2*u+2]}, {v(vQr)} offset:{L_KI - L_QI + (32*t + 16*u)*8}")
        def qt(t, u): g(f"ds_read_b64_tr_b16 {QT[t][2*u:2*u+2]}, {v(vQr)} offset:{(32*t + 16*u)*8}")
        def km(t, u): g(f"ds_read_b64_tr_b16 {KM[t][2*u:2*u+2]}, {v(vQr)} offset:{L_KI - L_QI + (32*t + 16*u)*8}")
        S1, S2, SM = g.vr("S1", 4), g.vr("S2", 4), g.vr("SM", 4)
        def mm(D, A_, B_, first): g(f"{MF32} {D}, {A_}, {B_}, {'0' if first else D}")
        def s1(t): mm(S1, KX[(0, t)], QT[t], t == 0)
        def s2(t): mm(S2, KX[(1, t)], QT[t], t == 0)
        def sm(t): mm(SM, KM[t], QT[t], t == 0)
        g(f"v_pk_mul_f32 {accQ[0:2]}, {accQ[0:2]}, {s(sC,2)}"); g(f"v_pk_mul_f32 {accQ[2:4]}, {accQ[2:4]}, {s(sC,2)}")
        vmf(1)
        g(f"v_cvt_pk_bf16_f32 {qp[0]}, {accQ[0]}, {accQ[1]}"); g(f"v_cvt_pk_bf16_f32 {qp[1]}, {accQ[2]}, {accQ[3]}")
        g(f"ds_write_b64 {v(vQw)}, {qp}")
        vmf(1)
        g(f"v_cvt_pk_bf16_f32 {kp[0]}, {accK[0]}, {accK[1]}"); g(f"v_cvt_pk_bf16_f32 {kp[1]}, {accK[2]}, {accK[3]}")
        g(f"ds_write_b64 {v(vQw)}, {kp} offset:{L_KI - L_QI}")
        vmf(1); kxread(0, 0)
        vmf(1); kxread(1, 0)
        vmf(1); avread(4)
        vmf(1); avread(5)
        g("s_waitcnt lgkmcnt(4)")
        st(3)
        g("s_barrier")
        st(4)
        h8 = g.vr("h8"); vxa = g.vr("vxa")
        qt(0, 0); qt(0, 1)
        vmf(1); qt(1, 0)
        vmf(1); qt(1, 1)
        vmf(1); avread(6)
        vmf(1); kxread(0, 1)
        vmf(1); kxread(1, 1)
        vmf(1); avread(7)
        s1(0); qt(2, 0); qt(2, 1)
        s2(0); kxread(0, 2); kxread(1, 2)
        vmf(1); qt(3, 0)
        s1(1); qt(3, 1); kxread(0, 3)
        s2(1); kxread(1, 3); km(0, 0)
        vmf(1); km(0, 1)
        s1(2); km(1, 0); km(1, 1)
        s2(2); km(2, 0); km(2, 1)
        vmf(1); km(3, 0)
        s1(3); km(3, 1); g(f"v_lshrrev_b32 {h8}, 1, {v(vL16)}")
        s2(3); g(f"buffer_store_dwordx2 {kp}, {h8}, {SRD}, {s(sKM)} offen{KVS}") if not opt.get("nokvst") else None
        vmf(1); g(f"v_add_u32 {vxa}, {s(sW2k)}, {v(vBuf)}")
        assert vpos[0] == 16, vpos
        VXF = [g.vr("VX0", 4), g.vr("VX1", 4)]
        ONE, HALF = g.vr("ONE", 4), g.vr("HALF", 4)
        WACC = [g.vr(f"WA{q}", 4) for q in range(4)]
        VE = g.vr("VE", 4)
        m_, u_ = g.vr("m", 2), g.vr("u")
        sm(0)
        g(f"ds_read_b128 {VXF[0]}, {vxa} offset:8192")
        g(f"v_max3_f32 {m_[0]}, {S1[0]}, {S1[1]}, {S1[2]}")
        sm(1)
        g(f"ds_read_b128 {VXF[1]}, {vxa} offset:{8192+1024}")
        g(f"v_max3_f32 {u_}, {S1[3]}, {S2[0]}, {S2[1]}")
        sm(2)
        g(f"ds_read_b128 {ONE}, {v(vL16)} offset:{L_ONE}")
        g(f"v_max3_f32 {m_[0]}, {m_[0]}, {S2[2]}, {S2[3]}")
        sm(3)
        g(f"ds_read_b128 {HALF}, {v(vL16)} offset:{L_HALF}")
        g(f"v_max_f32 {m_[0]}, {m_[0]}, {u_}")
        st(5)
        g(f"v_cvt_pk_bf16_f32 {VE[0]}, {accV[0][0]}, {accV[0][1]}"); g(f"v_cvt_pk_bf16_f32 {VE[1]}, {accV[0][2]}, {accV[0][3]}")
        g(f"v_cvt_pk_bf16_f32 {VE[2]}, {accV[1][0]}, {accV[1][1]}"); g(f"v_cvt_pk_bf16_f32 {VE[3]}, {accV[1][2]}, {accV[1][3]}")
        g(f"v_max3_f32 {u_}, {SM[0]}, {SM[1]}, {SM[2]}")
        g(f"v_max3_f32 {m_[0]}, {m_[0]}, {u_}, {SM[3]}")
        g(f"v_mov_b32 {u_}, {m_[0]}")
        g(f"ds_read_b128 {WACC[0]}, {v(vL16)} offset:{L_ZERO}")
        g(f"v_permlane32_swap_b32 {m_[0]}, {u_}")
        g(f"v_max_f32 {m_[0]}, {m_[0]}, {u_}")
        g(f"v_mov_b32 {u_}, {m_[0]}")
        g(f"ds_read_b128 {WACC[1]}, {v(vL16)} offset:{L_ZERO}")
        g(f"v_permlane16_swap_b32 {m_[0]}, {u_}")
        g(f"v_max_f32 {m_[0]}, {m_[0]}, {u_}")
        st(6)
        P12, PM = g.vr("P12", 4), g.vr("PM", 2)
        def psub(S):
            for i in (0, 2): g(f"v_pk_add_f32 {S[i:i+2]}, {S[i:i+2]}, {m_} op_sel_hi:[1,0] neg_lo:[0,1] neg_hi:[0,1]")
        psub(S1); psub(S2)
        for i in range(4): g(f"v_exp_f32 {S1[i]}, {S1[i]}")
        psub(SM)
        for i in range(4): g(f"v_exp_f32 {S2[i]}, {S2[i]}")
        g(f"v_cvt_pk_bf16_f32 {P12[0]}, {S1[0]}, {S1[1]}")
        g(f"v_cvt_pk_bf16_f32 {P12[1]}, {S1[2]}, {S1[3]}")
        g(f"v_cvt_pk_bf16_f32 {P12[2]}, {S2[0]}, {S2[1]}")
        g(f"v_cvt_pk_bf16_f32 {P12[3]}, {S2[2]}, {S2[3]}")
        O0, O1, L = g.vr("O0", 4), g.vr("O1", 4), g.vr("L", 4)
        st(7)
        g(f"v_exp_f32 {SM[0]}, {SM[0]}")
        mm(L, ONE, P12, True)
        g(f"buffer_store_dwordx4 {VE}, {v(vL16)}, {SRD}, {s(sVM)} offen{KVS}") if not opt.get("nokvst") else None
        g(f"s_cmp_eq_u32 {s(sStep)}, {nsteps-1}")
        g(f"s_cbranch_scc1 L_{name}_done")
        g(f"v_exp_f32 {SM[1]}, {SM[1]}")
        mm(O0, VXF[0], P12, True)
        g(f"v_exp_f32 {SM[2]}, {SM[2]}")
        mm(O1, VXF[1], P12, True)
        g(f"v_exp_f32 {SM[3]}, {SM[3]}")
        g(f"v_cvt_pk_bf16_f32 {PM[0]}, {SM[0]}, {SM[1]}")
        g(f"v_cvt_pk_bf16_f32 {PM[1]}, {SM[2]}, {SM[3]}")
        oa = g.vr("oa", 4, 1)
        g(f"{MF16} {L}, {HALF[0:2]}, {PM}, {L}")
        g(f"ds_read_b128 {WACC[2]}, {v(vL16)} offset:{L_ZERO}")
        g(f"v_add_u32 {oa[3]}, {s(sO+3)}, {v(vL16)}")
        g(f"{MF16} {O0}, {VE[0:2]}, {PM}, {O0}")
        g(f"ds_read_b128 {WACC[3]}, {v(vL16)} offset:{L_ZERO}")
        g(f"v_add_u32 {oa[0]}, {s(sO)}, {v(vL16)}")
        g(f"{MF16} {O1}, {VE[2:4]}, {PM}, {O1}")
        g(f"v_add_u32 {oa[1]}, {s(sO+1)}, {v(vL16)}")
        g(f"v_add_u32 {oa[2]}, {s(sO+2)}, {v(vL16)}")
        st(8)
        rl = g.vr("rl", 2)
        g(f"v_rcp_f32 {rl[0]}, {L[0]}")
        for i in (0, 2): g(f"v_pk_mul_f32 {O0[i:i+2]}, {O0[i:i+2]}, {rl} op_sel_hi:[1,0]")
        for i in (0, 2): g(f"v_pk_mul_f32 {O1[i:i+2]}, {O1[i:i+2]}, {rl} op_sel_hi:[1,0]")
        OA = [g.vr(f"OA{b}", 4) for b in range(4)]
        for j in range(4): g(f"v_cvt_pk_bf16_f32 {OA[0][j]}, {O0[j]}, {O1[j]}")
        g(f"ds_write_b128 {oa[3]}, {OA[0]}")
        def wo(b, q): g(f"{SMF} {WACC[q]}, {OA[b]}, {a(AWO + (b*4+q)*8, 8)}, {v(vIdx)}")
        st(9)
        wo(0, 0); wo(0, 1); wo(0, 2)
        g("s_waitcnt lgkmcnt(0)")
        g("s_barrier")
        st(10)
        for b in range(1, 4): g(f"ds_read_b128 {OA[b]}, {oa[b-1]}")
        wo(0, 3)
        PK = [g.vr("PK0", 4), g.vr("PK1", 4)]
        def cvt(q):
            g(f"v_cvt_pk_bf16_f32 {PK[q//2][2*(q%2)]}, {WACC[q][0]}, {WACC[q][1]}")
            g(f"v_cvt_pk_bf16_f32 {PK[q//2][2*(q%2)+1]}, {WACC[q][2]}, {WACC[q][3]}")
            for k_ in range(2): g(f"v_and_or_b32 {PK[q//2][2*(q%2)+k_]}, {PK[q//2][2*(q%2)+k_]}, -2, {s(sTag)}")
        def pst(q2): g(f"buffer_store_dwordx4 {PK[q2]}, {v(vH1s)}, {SRD}, {s(sPst+q2)} offen{st_mod}")
        def cvt1(q, k_): g(f"v_cvt_pk_bf16_f32 {PK[q//2][2*(q%2)+k_]}, {WACC[q][2*k_]}, {WACC[q][2*k_+1]}")
        def tag1(q, k_): g(f"v_and_or_b32 {PK[q//2][2*(q%2)+k_]}, {PK[q//2][2*(q%2)+k_]}, -2, {s(sTag)}")
        for b in range(1, 4): wo(b, 0)
        for b in range(1, 4): wo(b, 1)
        cvt1(0, 0)
        wo(1, 2); cvt1(0, 1); tag1(0, 0)
        wo(2, 2); tag1(0, 1); cvt1(1, 0)
        wo(3, 2); cvt1(1, 1); tag1(1, 0)
        wo(1, 3); tag1(1, 1); pst(0)
        wo(2, 3); cvt1(2, 0); cvt1(2, 1)
        wo(3, 3); tag1(2, 0); tag1(2, 1)
        cvt1(3, 0); cvt1(3, 1); tag1(3, 0); tag1(3, 1); pst(1)
        st(11)
        g(f"s_branch L_{N}_top")
        items = []
        for it in g.items:
            if it[0] == "raw" and it[1].startswith("KVPOLL"):
                kva, kvb = g.vr("kva"), g.vr("kvb")
                lab = f"L_{N}_kvp"
                seqk = [("ins", f"s_mov_b32 {s(sSpin)}, {SPIN_MAX}"), ("label", lab),
                        ("ins", f"v_lshlrev_b32 {kva}, 3, {v(vL16)}"), ("ins", f"v_min_u32 {kva}, {15*128}, {kva}"),
                        ("ins", f"s_mov_b32 {s(sT2)}, {WS_FLAG + F_KV*128}"),
                        ("ins", f"buffer_load_dword {kvb}, {kva}, {SRD}, {s(sT2)} offen sc1"), ("ins", "s_waitcnt vmcnt(0)"),
                        ("ins", f"v_cmp_gt_u32 vcc, 64, {kvb}"), ("ins", "s_nop 4"),
                        ("ins", f"s_ff1_i32_b64 {s(sKVok)}, vcc"), ("ins", f"s_min_u32 {s(sKVok)}, {s(sKVok)}, 16"),
                        ("ins", f"s_cmp_gt_u32 {s(sKVok)}, {s(sT1)}"), ("ins", f"s_cbranch_scc1 L_{N}_kvok"), ("ins", "s_sleep 2"),
                        ("ins", f"s_sub_u32 {s(sSpin)}, {s(sSpin)}, 1"), ("ins", f"s_cbranch_scc0 {lab}"), ("ins", f"s_branch L_{name}_abort")]
                items.extend(seqk)
            elif it == ("raw", "DUMP"):
                if stamps:
                    items.append(("ins", "s_waitcnt lgkmcnt(0)"))
                    dv = g.vr("dv", 4); dz = g.vr("dz")
                    for x in [f"s_lshl_b32 {s(sT0)}, {s(sH)}, 2", f"s_add_u32 {s(sT0)}, {s(sT0)}, {s(sW)}", f"s_lshl_b32 {s(sT0)}, {s(sT0)}, 6",
                              f"s_add_u32 {s(sT0)}, {s(sT0)}, {s(sStep)}", f"s_lshl_b32 {s(sT0)}, {s(sT0)}, 6", f"s_add_u32 {s(sT0)}, {s(sT0)}, {WS_DBG + 4096}",
                              f"v_mov_b32 {dz}, 0", "s_mov_b64 exec, 1"]: items.append(("ins", x))
                    for k in range(4):
                        for i in range(4): items.append(("ins", f"v_mov_b32 {dv[i]}, s{70+2*(4*k+i)}"))
                        items.append(("ins", f"buffer_store_dwordx4 {dv}, {dz}, {SRD}, {s(sT0)} offen offset:{16*k}"))
                    items.append(("ins", "s_mov_b64 exec, -1")); items.append(("ins", "s_nop 4"))
            else: items.append(it)
        g.items = items
        g.finish(outer_labels=(f"L_{N}_top", f"L_{N}_pre", f"L_{N}_preA"), verbose=False)
    emit_loop(name + "f", "")
    emit_loop(name + "s", " sc1")

    p.label(f"L_{name}_abort")
    p(f"v_mov_b32 v20, 0xdead")
    p(f"v_mov_b32 v21, {s(sStep)}")
    p(f"v_mov_b32 v22, 0")
    p(f"global_store_dwordx2 v22, v[20:21], s[56:57] offset:{(D_ABORT if mega else 32)*4}")
    p.label(f"L_{name}_done")
    if mega:
        p("s_waitcnt vmcnt(0)")
        p("s_barrier")
        p(f"s_cmp_lg_u32 {s(sW)}, 0"); p(f"s_cbranch_scc1 L_{name}_fin")
        p("s_mov_b64 exec, 1")
        p(f"v_mov_b32 v20, 0"); p("v_mov_b32 v21, 1"); p(f"s_mov_b32 {s(sT2)}, {WS_FLAG + F_RECF*128}")
        p(f"buffer_atomic_add v21, v20, {SRD}, {s(sT2)} offen")
        p("s_mov_b64 exec, -1")
    p(f"s_cmp_lg_u32 {s(sW)}, 0")
    p(f"s_cbranch_scc1 L_{name}_fin")
    if not stamps:
        p.raw("    s_memrealtime s[100:101]")
        p("s_waitcnt lgkmcnt(0)")
        p("s_sub_u32 s98, s98, s96")
        p("s_sub_u32 s100, s100, s96")
        p("v_mov_b32 v22, s98")
        p("v_mov_b32 v23, s100")
    p("v_mov_b32 v20, s58")
    p("v_mov_b32 v21, s59")
    p(f"s_lshl_b32 {s(sT0)}, {s(sH)}, 6")
    p(f"s_add_u32 {s(sT0)}, {s(sT0)}, {WS_DBG}")
    p(f"v_mov_b32 v19, 0")
    p(f"s_mov_b64 exec, 1")
    p(f"buffer_store_dwordx4 v[20:23], v19, {SRD}, {s(sT0)} offen")
    p.label(f"L_{name}_fin")
    p("s_waitcnt vmcnt(0)")
    p.label(f"L_{name}_end")
    p("s_endpgm")
    return p

def kd(name, vgpr=512, accum=256, sgpr=102):
    return f""".section .rodata,"a"
.p2align 6
.amdhsa_kernel {name}
  .amdhsa_next_free_vgpr {vgpr}
  .amdhsa_next_free_sgpr {sgpr}
  .amdhsa_accum_offset {accum}
  .amdhsa_group_segment_fixed_size 0
  .amdhsa_kernarg_size 136
  .amdhsa_user_sgpr_count 2
  .amdhsa_user_sgpr_kernarg_segment_ptr 1
  .amdhsa_system_sgpr_workgroup_id_x 1
.end_amdhsa_kernel
.text
"""

def build(path, stamps=False, opt=None, nsteps=64):
    p = gen_rec("rec_kernel", stamps=stamps, opt=opt, nsteps=nsteps)
    hdr = f"; @launch kernel=rec_kernel grid=(256,1,1) block=(256,1,1) lds={LDS_BYTES}\n.amdgcn_target \"amdgcn-amd-amdhsa--gfx950\"\n.text\n.globl rec_kernel\n"
    open(path, "w").write(hdr + p.text() + kd("rec_kernel"))
    return p

if __name__ == "__main__":
    import sys, json
    if len(sys.argv) > 2:
        opt = json.loads(sys.argv[2]); tag = sys.argv[1]
        build(f"gen/{tag}_64.s", opt=opt); build(f"gen/{tag}_32.s", opt=opt, nsteps=32); build(f"gen/{tag}_st.s", opt=opt, stamps=True)
        sys.exit(0)
    build("rec_stamps.s", stamps=True)
    build("rec_32.s", nsteps=32)
    p = build("rec_test.s")
    print(p.stats, LDS_BYTES)
```
